```python
import torch

def _softmax(x, axis=-1):
    return torch.softmax(x, dim=axis)
def _gelu(x):
    return torch.nn.functional.gelu(x, approximate="tanh")
def _silu(x):
    return torch.nn.functional.silu(x)
def _sigmoid(x):
    return torch.sigmoid(x)
def _layernorm(x, axis=-1, eps=1e-5):
    m = x.mean(dim=axis, keepdim=True)
    v = x.var(dim=axis, keepdim=True, unbiased=False)
    return (x - m) / torch.sqrt(v + eps)
def _scatter_add(tgt, idx, src, axis=0):
    return tgt.clone().index_add_(axis, idx, src)
def _segment_sum(src, seg, n):
    out = torch.zeros((n,) + src.shape[1:], dtype=src.dtype)
    return out.index_add_(0, seg, src)
def _pad(x, pw):
    flat = tuple(v for pair in reversed(pw) for v in pair)
    return torch.nn.functional.pad(x, flat)

kernel_name = 'sequential_preLN__grouped_kv_mqa__mixer_s_mlp__prompt'

def setup_inputs():

    _w = (lambda a: (lambda t: t.to(torch.bfloat16) if t.is_floating_point() else t)(torch.as_tensor(a)))
    def _A_setup():
        B, S, D, H = 1, 2048, 512, 32
        Dh = D // H
        return {
            "x": _w((lambda *s: torch.randn(*s, dtype=torch.bfloat16) * 0.05)(B, S, D)),
            "wq": _w((lambda *s: torch.randn(*s, dtype=torch.bfloat16) * 0.05)(D, H * Dh)),
            "wk": _w((lambda *s: torch.randn(*s, dtype=torch.bfloat16) * 0.05)(D, Dh)),
            "wv": _w((lambda *s: torch.randn(*s, dtype=torch.bfloat16) * 0.05)(D, Dh)),
            "wo": _w((lambda *s: torch.randn(*s, dtype=torch.bfloat16) * 0.05)(H * Dh, D)),
        }
    _A_in = _A_setup()

    def _B_setup():
        B, S, D, F = 1, 2048, 512, 1792
        return {
            "x":  _w((lambda *s: torch.randn(*s, dtype=torch.bfloat16) * 0.05)(B, S, D)),
            "w1": _w((lambda *s: torch.randn(*s, dtype=torch.bfloat16) * 3.2)(D, D) * (D ** -0.5)),
            "w2": _w((lambda *s: torch.randn(*s, dtype=torch.bfloat16) * 3.2)(D, D) * (D ** -0.5)),
            "w3": _w((lambda *s: torch.randn(*s, dtype=torch.bfloat16) * 3.2)(D, F) * (D ** -0.5)),
            "w4": _w((lambda *s: torch.randn(*s, dtype=torch.bfloat16) * 1.6)(F, D) * (F ** -0.5)),
        }
    _B_in = _B_setup()

    return {
        "A_x": _A_in["x"],
        "A_wq": _A_in["wq"],
        "A_wk": _A_in["wk"],
        "A_wv": _A_in["wv"],
        "A_wo": _A_in["wo"],
        "B_x": _B_in["x"],
        "B_w1": _B_in["w1"],
        "B_w2": _B_in["w2"],
        "B_w3": _B_in["w3"],
        "B_w4": _B_in["w4"],
    }

def reference(A_x, A_wq, A_wk, A_wv, A_wo, B_x, B_w1, B_w2, B_w3, B_w4):
    def _A_ref(x, wq, wk, wv, wo):
        B, S, D = x.shape
        H = 32
        Dh = D // H
        q = (lambda x, *d: x.permute(*d))((x @ wq).reshape(B, S, H, Dh), 0, 2, 1, 3)
        k = x @ wk
        v = x @ wv
        scores = torch.einsum("bhqd,bkd->bhqk", q, k) * (Dh ** -0.5)
        p = _softmax(scores, axis=-1)
        o = torch.einsum("bhqk,bkd->bhqd", p, v)
        return (lambda x, *d: x.permute(*d))(o, 0, 2, 1, 3).reshape(B, S, H * Dh) @ wo

    def _B_ref(x, w1, w2, w3, w4):
        B, S, D = x.shape
        h = _gelu(_layernorm(x, axis=-1) @ w1)
        c = D // 4
        g0 = _pad(h[:, :, 0*c:1*c], ((0, 0), (1, 0), (0, 0)))[:, :S, :]
        g1 = _pad(h[:, :, 1*c:2*c], ((0, 0), (0, 1), (0, 0)))[:, 1:, :]
        g2 = _pad(h[:, :, 2*c:3*c], ((0, 0), (2, 0), (0, 0)))[:, :S, :]
        g3 = _pad(h[:, :, 3*c:   ], ((0, 0), (0, 2), (0, 0)))[:, 2:, :]
        hs = torch.concatenate([g0, g1, g2, g3], axis=-1) @ w2
        x1 = x + hs
        h2 = _gelu(_layernorm(x1, axis=-1) @ w3) @ w4
        return x1 + h2

    x = A_x
    h = x + _A_ref(_layernorm(x, axis=-1), A_wq, A_wk, A_wv, A_wo)
    h2 = h + _B_ref(_layernorm(h, axis=-1), B_w1, B_w2, B_w3, B_w4)
    return h2
```

```python
from asmlib import *

def gen_k2(Gl):
    OPT = Gl["OPT"]; f32 = Gl["f32"]; srd = Gl["srd"]; tr_lane = Gl["tr_lane"]
    WS_QF, WS_KV, WS_O, WS_H, WS_HH, WS_X1, WS_PART, WS_END, WS_STAMP = [Gl[k] for k in
        ("WS_QF", "WS_KV", "WS_O", "WS_H", "WS_HH", "WS_X1", "WS_PART", "WS_END", "WS_STAMP")]
    ONES, EPS, GA, GB, POLL_LIMIT = Gl["ONES"], Gl["EPS"], Gl["GA"], Gl["GB"], Gl["POLL_LIMIT"]
    A = Asm()
    sX, sWO, sW1, sW2, sW3, sW4, sWS, sHH, sOUT, sDBG = 4, 8, 12, 16, 20, 24, 28, 32, 36, 40
    sL, sG, sJJ, sg, sj, sW, st, sKH, sf, sSTG = 44, 45, 46, 47, 48, 49, 50, 51, 52, 53
    sB512, sB3, sB4, sOWN, sPOLL, sT, sT2, sT3 = 54, 55, 56, 57, 58, 59, 60, 61
    sVM = 62
    sLOCS, sLOCN, sNIB, sCNT, sOFR, sPRT, sGB = 64, 65, 66, 67, 68, 69, 70
    sSTAMP = 72
    K1024 = 1024
    EXCH, GBUF, STATS, SLOT_B, SLOT_A, SLOT_C = 64 * K1024, 64 * K1024, 92 * K1024, 96 * K1024, 128 * K1024, 32 * K1024
    S = [8, 24]; ACC = 40; Q = 56; KF = [60, 72]; VF = [64, 76]
    WO, W1, W2A, SENT, XRES = 84, 148, 212, 244, 248
    ACC0, CS1, POLL, BF, HR = 8, 24, 40, 56, 72
    MU, R1, R12 = 80, 81, 82
    ONEF = 244
    T0 = 252
    W2B, CS3 = 84, 116
    W3R = [132, 148, 164, 180, 196, 212, 228, 84]
    POLL2 = 100
    ACC1 = 24
    nstamp = [0]
    def stamp():
        if not OPT["stamps"]: return
        A("s_memtime %s", sr(sSTAMP + 2 * nstamp[0], 2))
        A("s_waitcnt lgkmcnt(0)"); A.lg = []
        nstamp[0] += 1

    def dma_block(srdreg, voff, sbase, const, lds_const, tag):
        A("s_add_u32 m0, s%d, %d", sSTG, lds_const)
        A("s_add_u32 s%d, s%d, %d", sT, sbase, const)
        A.vmem("buffer_load_dwordx4 v%d, %s, s%d offen lds" % (voff, sr(srdreg, 4), sT), tag)
    def tr_block(base, off, dst, tag):
        A.lds("ds_read_b64_tr_b16 %s, v%d offset:%d" % (vr(dst, 2), base, off), tag)
        A.lds("ds_read_b64_tr_b16 %s, v%d offset:%d" % (vr(dst + 2, 2), base, off + 256), tag)
    def round_dma(kind, slot, tag):
        for i in range(4):
            if kind[0] == "sq": dma_block(kind[1], 3, sB512, (4 * kind[2] + i) * 16384, slot + 1024 * i, tag)
            elif kind[0] == "w3": dma_block(sW3, 6, sB3, (4 * kind[1] + i) * 16 * 3584, slot + 1024 * i, tag)
            else: dma_block(sW4, 3, sB4, (2 * kind[1] + (i >> 1)) * 16384 + (i & 1) * 64, slot + 1024 * i, tag)
            yield
    def round_tr(base, off, dst, tag_vm, tag_lg):
        A.wait(vm=tag_vm)
        for i in range(4):
            tr_block(base, off + 1024 * i, dst + 4 * i, tag_lg)
            yield
    def run(gen):
        for _ in gen: pass
    def publish(data, voff, srdreg, soff, loc, off=0):
        base = "buffer_store_dwordx4 %s, v%d, %s, s%d offen offset:%d" % (vr(data, 4), voff, sr(srdreg, 4), soff, off)
        if not OPT["local"]:
            A.vmem(base + " sc1", "pub"); return
        l1, l2 = A.newlabel("Lp"), A.newlabel("Lq")
        A("s_cmp_eq_u32 s%d, 1", loc)
        A("s_cbranch_scc1 %s", l1)
        A(base + " sc1")
        A("s_branch %s", l2)
        A.label(l1)
        A.vmem(base, "pub")
        A.label(l2)
    def poll(loads):
        l1, l2 = A.newlabel("Lw"), A.newlabel("Lg")
        A("s_mov_b32 s%d, 0", sCNT)
        A.label(l1)
        for (dst, voff, sd, soff, imm) in loads:
            A("buffer_load_dwordx4 %s, v%d, %s, s%d offen offset:%d sc1" % (vr(dst, 4), voff, sr(sd, 4), soff, imm))
        A("s_add_u32 s%d, s%d, 1", sCNT, sCNT)
        A("s_waitcnt vmcnt(0)"); A.vm = []
        d = [x[0] for x in loads]
        A("v_max3_u32 v%d, v%d, v%d, v%d", T0, d[0], d[1], d[2])
        k = 3
        while k < len(d):
            if k + 1 < len(d): A("v_max3_u32 v%d, v%d, v%d, v%d", T0, T0, d[k], d[k + 1]); k += 2
            else: A("v_max_u32 v%d, v%d, v%d", T0, T0, d[k]); k += 1
        A("v_cmp_eq_u32 vcc, -1, v%d", T0)
        A("s_cbranch_vccz %s", l2)
        A("s_cmp_lt_u32 s%d, %d", sCNT, POLL_LIMIT)
        A("s_cbranch_scc1 %s", l1)
        A.label(l2)

    A("s_cmp_ge_u32 s2, 256")
    A("s_cbranch_scc1 K2_end")
    A("s_load_dwordx2 s[72:73], s[0:1], 0")
    A("s_load_dwordx2 s[74:75], s[0:1], 32")
    A("s_load_dwordx8 s[76:83], s[0:1], 48")
    A("s_load_dwordx4 s[84:87], s[0:1], 80")
    A("s_load_dwordx2 s[88:89], s[0:1], 96")
    A("v_lshrrev_b32 v2, 6, v0")
    A("v_and_b32 v0, 63, v0")
    A("v_readfirstlane_b32 s%d, v2", sW)
    A("v_lshlrev_b32 v1, 4, v0")
    A("s_and_b32 s%d, s2, 7", sT)
    A("s_lshl_b32 s%d, s%d, 5", sT, sT)
    A("s_lshr_b32 s%d, s2, 3", sT2)
    A("s_add_u32 s%d, s%d, s%d", sL, sT, sT2)
    A("s_lshl_b32 s%d, s%d, 13", sT2, sL)
    A("s_lshl_b32 s%d, s%d, 10", sT3, sW)
    A("s_add_u32 s%d, s%d, s%d", sT2, sT2, sT3)
    A("s_waitcnt lgkmcnt(0)")
    srd(A, sWS, 88, WS_END)
    A.vmem("buffer_load_dwordx4 %s, v1, %s, s%d offen" % (vr(Q, 4), sr(sWS, 4), sT2), "q")
    for i in range(16):
        A("s_add_u32 m0, s%d, %d", sT3, 8192 * i)
        A("s_add_u32 s%d, s%d, 0x%x", sT, sT3, WS_KV + 8192 * i)
        A.vmem("buffer_load_dwordx4 v1, %s, s%d offen lds" % (sr(sWS, 4), sT), "kv%d" % i)
    srd(A, sX, 72, 2048 * 1024)
    srd(A, sWO, 74, 512 * 1024)
    srd(A, sW1, 76, 512 * 1024)
    srd(A, sW2, 78, 512 * 1024)
    srd(A, sW3, 80, 512 * 3584)
    srd(A, sW4, 82, 1792 * 1024)
    srd(A, sOUT, 84, 2048 * 1024)
    srd(A, sDBG, 86, 256)
    A("s_add_u32 s%d, s88, 0x%x", sHH, WS_HH)
    A("s_addc_u32 s%d, s89, 0", sHH + 1)
    A("s_mov_b32 s%d, 0x%x", sHH + 2, 2048 * 1024)
    A("s_mov_b32 s%d, 0x00020000", sHH + 3)
    stamp()
    A("s_lshr_b32 s%d, s%d, 3", sG, sL)
    A("s_and_b32 s%d, s%d, 7", sJJ, sL)
    A("s_lshr_b32 s%d, s%d, 2", sg, sL)
    A("s_and_b32 s%d, s%d, 3", sj, sL)
    A("s_and_b32 s%d, s%d, 3", st, sW)
    A("s_lshr_b32 s%d, s%d, 2", sKH, sW)
    A("s_lshl_b32 s%d, s%d, 1", sf, st)
    A("s_add_u32 s%d, s%d, s%d", sf, sf, sKH)
    A("s_lshl_b32 s%d, s%d, 12", sSTG, sW)
    A("s_lshl_b32 s%d, s%d, 18", sB512, sKH)
    A("s_lshl_b32 s%d, s%d, 8", sT, sj)
    A("s_add_u32 s%d, s%d, s%d", sB512, sB512, sT)
    A("s_lshl_b32 s%d, s%d, 6", sT, st)
    A("s_add_u32 s%d, s%d, s%d", sB512, sB512, sT)
    A("s_mul_i32 s%d, s%d, 448", sB3, sJJ)
    A("s_min_u32 s%d, s%d, 6", sT, sW)
    A("s_lshl_b32 s%d, s%d, 6", sT, sT)
    A("s_add_u32 s%d, s%d, s%d", sB3, sB3, sT)
    A("s_mul_i32 s%d, s%d, %d", sB4, sJJ, 224 * 1024)
    A("s_lshl_b32 s%d, s%d, 7", sT, sW)
    A("s_add_u32 s%d, s%d, s%d", sB4, sB4, sT)
    A("s_lshl_b32 s%d, s%d, 3", sT, sL)
    A("s_add_u32 s%d, s%d, s%d", sT, sT, sf)
    A("s_lshl_b32 s%d, s%d, 10", sOWN, sT)
    A("s_lshl_b32 s%d, s%d, 15", sPOLL, sg)
    A("s_add_u32 s%d, s%d, s%d", sPOLL, sPOLL, sSTG)
    A("s_lshl_b32 s%d, s%d, 1", sT, sG)
    A("s_add_u32 s%d, s%d, s%d", sT, sT, sKH)
    A("s_lshl_b32 s%d, s%d, 5", sT, sT)
    A("s_lshl_b32 s%d, s%d, 2", sT2, sJJ)
    A("s_add_u32 s%d, s%d, s%d", sT, sT, sT2)
    A("s_add_u32 s%d, s%d, s%d", sT, sT, st)
    A("s_lshl_b32 s%d, s%d, 10", sT, sT)
    A("s_add_u32 s%d, s%d, 0x%x", sOFR, sT, WS_O)
    A("s_lshl_b32 s%d, s%d, 19", sT, sG)
    A("s_lshl_b32 s%d, s%d, 15", sT2, sW)
    A("s_add_u32 s%d, s%d, s%d", sT, sT, sT2)
    A("s_lshl_b32 s%d, s%d, 10", sT2, sJJ)
    A("s_add_u32 s%d, s%d, s%d", sT, sT, sT2)
    A("s_add_u32 s%d, s%d, 0x%x", sPRT, sT, WS_PART)
    A("s_mov_b32 s%d, 0xffff0000", sVM)
    A("s_mov_b32 s%d, 0xffff0000", sVM + 1)
    A("s_mov_b32 s%d, %s", sGB, f32(GB))
    A("s_mov_b32 s%d, %s", sGB + 1, f32(GB))
    A("s_getreg_b32 s%d, hwreg(HW_REG_XCC_ID)", sNIB)
    A("s_and_b32 s%d, s%d, 7", sNIB, sNIB)
    A("s_or_b32 s%d, s%d, 8", sNIB, sNIB)
    A("v_add_u32 v2, 0x10000, v1")
    A("v_lshrrev_b32 v7, 2, v0")
    A("v_and_b32 v4, 3, v0")
    A("v_lshlrev_b32 v4, 4, v4")
    A("v_lshl_add_u32 v3, v7, 10, v4")
    A("v_mul_u32_u24 v6, 3584, v7")
    A("v_add_u32 v6, v6, v4")
    tr_lane(A, 5, 0, 7, 64)
    A("s_add_u32 s%d, s%d, %d", sT, sSTG, SLOT_B)
    A("v_add_u32 v5, s%d, v5", sT)
    A("v_bfe_u32 v7, v0, 4, 1")
    A("v_xor_b32 v4, s%d, v7", sKH)
    A("v_lshl_add_u32 v4, v4, 5, v5")
    A("v_lshl_add_u32 v5, v7, 5, v5")
    for i in range(4): A("v_mov_b32 v%d, -1", SENT + i)
    for p in range(2):
        for i in range(8): A("v_mov_b32 v%d, 0x%x", VF[p] + i, ONES)
    def rowmajor_off(dst, tmp):
        A("v_and_b32 v%d, 31, v0", dst)
        A("v_lshlrev_b32 v%d, 10, v%d", dst, dst)
        A("v_lshrrev_b32 v%d, 5, v0", tmp)
        A("v_lshl_add_u32 v%d, v%d, 4, v%d", dst, tmp, dst)
        A("s_lshl_b32 s%d, s%d, 15", sT2, sg)
        A("s_lshl_b32 s%d, s%d, 8", sT3, sj)
        A("s_add_u32 s%d, s%d, s%d", sT2, sT2, sT3)
        A("s_lshl_b32 s%d, s%d, 5", sT3, sf)
        A("s_add_u32 s%d, s%d, s%d", sT2, sT2, sT3)
    rowmajor_off(7, T0)
    A.vmem("buffer_load_dwordx4 %s, v7, %s, s%d offen" % (vr(XRES, 4), sr(sX, 4), sT2), "xres")
    A("s_lshl_b32 s%d, s%d, 14", sT, sKH)
    A("v_add_u32 v7, s%d, v1", sT)

    NT = 64; TB = OPT.get("tb", 12)
    def kvaddr(T): return (1, T * 2048) if T < 32 else (2, (T - 32) * 2048)
    def rdK(T, dst):
        b, o = kvaddr(T); A.lds("ds_read_b128 %s, v%d offset:%d" % (vr(dst, 4), b, o), "K%d" % T)
    def rdV(T, dst):
        b, o = kvaddr(T)
        A("s_mov_b64 exec, %s", sr(sVM, 2))
        A.lds("ds_read_b128 %s, v%d offset:%d" % (vr(dst, 4), b, o + 1024), "V%d" % T)
        A.lds("ds_read_b128 %s, v%d offset:%d" % (vr(dst + 4, 4), b, o + 768), "V%d" % T)
        A("s_mov_b64 exec, -1")
    def side_jobs():
        def fill(soff_reg, const):
            A("s_add_u32 s%d, s%d, 0x%x", sT, soff_reg, const)
            A.vmem("buffer_store_dwordx4 %s, v1, %s, s%d offen sc1" % (vr(SENT, 4), sr(sWS, 4), sT), "fill")
        jobs = {}
        fl = [(sOFR, 0), (sOWN, WS_H), (sOWN, WS_HH), (sOWN, WS_X1)] + [(sPRT, mt * 32 * 8192 + q * 8192) for mt in range(2) for q in range(4)]
        for i, (r, c) in enumerate(fl):
            jobs.setdefault(i // 2, []).append(lambda r=r, c=c: fill(r, c))
        rounds = [(("sq", sWO, r), WO + 16 * r) for r in range(4)] + [(("sq", sW1, r), W1 + 16 * r) for r in range(4)] + \
                 [(("sq", sW2, r), W2A + 16 * r) for r in range(2)] + [(("sq", sW2, 2), None)]
        t0 = 6
        for i, (kind, dst) in enumerate(rounds):
            def d(kind=kind, i=i):
                A.wait(lg="rt%d" % (i - 1))
                run(round_dma(kind, SLOT_A, "rd%d" % i))
            jobs.setdefault(t0 + 5 * i, []).append(d)
            if dst is not None:
                jobs.setdefault(t0 + 5 * i + 4, []).append(lambda i=i, dst=dst: run(round_tr(4, SLOT_A - SLOT_B, dst, "rd%d" % i, "rt%d" % i)))
        return jobs
    jobs = side_jobs()
    prio = {0: 3, TB // 2: 2, TB - 3: 1, TB - 1: 0, TB: 3, 44: 2, 57: 1, 62: 0}
    npc = ((TB + 2) * 2 - 1) // 8
    A.wait(vm="kv%d" % npc)
    A("s_barrier")
    rdK(0, KF[0]); rdK(1, KF[1])
    A.wait(lg="K0")
    A.mfma(S[0], KF[0], Q)
    A("s_nop 11")
    stamp()
    for t in range(NT):
        p = t & 1; q = 1 - p
        if t == TB:
            A.wait(vm=["kv15", "fill"])
            A("s_barrier")
            lb = A.newlabel("Ls")
            A("s_cmp_lg_u32 s%d, 0", sW)
            A("s_cbranch_scc1 %s", lb)
            A("s_lshl_b32 s%d, s%d, 2", sT, sJJ)
            A("s_lshl_b32 s%d, s%d, s%d", sT, sNIB, sT)
            A("v_mov_b32 v%d, s%d", T0, sT)
            A("s_lshl_b32 s%d, s%d, 2", sT, sG)
            A("v_mov_b32 v%d, 0", T0 + 1)
            A("s_mov_b64 exec, 1")
            A("buffer_atomic_or v%d, v%d, %s, s%d offen" % (T0, T0 + 1, sr(sDBG, 4), sT))
            A("s_mov_b64 exec, -1")
            A("s_waitcnt vmcnt(0)")
            A.label(lb)
        if t in prio: A("s_setprio %d", prio[t])
        valu = []
        for k in range(8):
            valu.append("v_exp_f32 v%d, v%d" % (S[p] + 2 * k, S[p] + 2 * k))
            valu.append("v_exp_f32 v%d, v%d" % (S[p] + 2 * k + 1, S[p] + 2 * k + 1))
            if k >= 1: valu.append("v_cvt_pk_bf16_f32 v%d, v%d, v%d" % (S[p] + k - 1, S[p] + 2 * k - 2, S[p] + 2 * k - 1))
        valu.append("v_cvt_pk_bf16_f32 v%d, v%d, v%d" % (S[p] + 7, S[p] + 14, S[p] + 15))
        for i, x in enumerate(valu):
            if i == 2:
                A.wait(lg=["V%d" % (t - 1), "K%d" % (t + 1)])
                if t >= 1: A.mfma(ACC, VF[q], S[q], ACC if t > 1 else None)
            if i == 5 and t + 2 < NT: rdK(t + 2, KF[p])
            if i == 7 and t >= 1: A.mfma(ACC, VF[q] + 4, S[q] + 4, ACC)
            if i == 11 and t + 1 < NT: A.mfma(S[q], KF[q], Q)
            if i == 14: rdV(t, VF[p])
            if i == 17:
                for jb in jobs.get(t, []): jb()
            A(x)
    A.wait(lg="V63")
    A("s_nop 0")
    A.mfma(ACC, VF[1], S[1], ACC)
    A.mfma(ACC, VF[1] + 4, S[1] + 4, ACC)
    A("s_and_b32 s%d, s%d, 1", sT, sg)
    A("s_lshl_b32 s%d, s%d, 1", sT, sT)
    A("s_add_u32 s%d, s%d, s%d", sT, sT, sG)
    A("s_sub_u32 s%d, s%d, 1", sT, sT)
    A("s_cmp_lt_u32 s%d, 32", sT)
    A("s_cselect_b32 s%d, s%d, s%d", sT, sT, sG)
    A("s_lshl_b32 s%d, s%d, 2", sT, sT)
    A("s_lshl_b32 s%d, s%d, 2", sT2, sG)
    A("v_mov_b32 v%d, 0", T0 + 1)
    A("s_mov_b32 s%d, 0", sCNT)
    A.label("L_stat")
    A("buffer_load_dword v%d, v%d, %s, s%d offen sc1" % (T0 + 2, T0 + 1, sr(sDBG, 4), sT2))
    A("buffer_load_dword v%d, v%d, %s, s%d offen sc1" % (T0 + 3, T0 + 1, sr(sDBG, 4), sT))
    A("s_add_u32 s%d, s%d, 1", sCNT, sCNT)
    A("s_waitcnt vmcnt(0)"); A.vm = []
    A("v_readfirstlane_b32 s%d, v%d", sLOCS, T0 + 2)
    A("v_readfirstlane_b32 s%d, v%d", sLOCN, T0 + 3)
    A("s_and_b32 s%d, s%d, s%d", sT3, sLOCS, sLOCN)
    A("s_and_b32 s%d, s%d, 0x88888888", sT3, sT3)
    A("s_cmp_eq_u32 s%d, 0x88888888", sT3)
    A("s_cbranch_scc1 L_stat_ok")
    A("s_cmp_lt_u32 s%d, %d", sCNT, POLL_LIMIT)
    A("s_cbranch_scc1 L_stat")
    A.label("L_stat_ok")
    A("s_mul_i32 s%d, s%d, 0x11111111", sT3, sNIB)
    A("s_cmp_eq_u32 s%d, s%d", sLOCS, sT3)
    A("s_cselect_b32 s%d, 1, 0", sLOCS)
    A("s_cmp_eq_u32 s%d, s%d", sLOCN, sT3)
    A("s_cselect_b32 s%d, s%d, 0", sLOCN, sLOCS)
    A("s_mov_b32 s%d, 0x%08x", sT, (127 - 64) << 23)
    A("s_mov_b32 s%d, 0x%08x", sT2, (127 + 64) << 23)
    A("v_cmp_nge_f32 vcc, v%d, s%d", ACC, sT)
    A("s_cbranch_vccnz L_slow")
    A("v_cmp_nle_f32 vcc, v%d, s%d", ACC, sT2)
    A("s_cbranch_vccnz L_slow")
    A.label("L_attn_done")
    A("v_rcp_f32 v%d, v%d", T0, ACC)
    A("s_nop 0")
    for i in range(8): A("v_mul_f32 v%d, v%d, v%d", ACC + 8 + i, ACC + 8 + i, T0)
    for i in range(4): A("v_cvt_pk_bf16_f32 v%d, v%d, v%d", Q + i, ACC + 8 + 2 * i, ACC + 9 + 2 * i)
    A("v_min_u32 v%d, -2, v%d", Q, Q)
    publish(Q, 1, sWS, sOFR, sLOCS)
    stamp()
    A("s_barrier")

    for i in range(4): A("v_mov_b32 v%d, 0x%x", ONEF + i, ONES)
    def colsum(dst, wregs, first):
        for k, w in enumerate(wregs):
            A.mfma(dst, w, ONEF, None if (first and k == 0) else dst)
    def stage_act(regs, off0):
        A("v_add_u32 v%d, s%d, v1", T0, sSTG)
        for i in range(4):
            A.lds("ds_write_b128 v%d, %s offset:%d" % (T0, vr(regs + 4 * i, 4), off0 + 1024 * i))
    def stats_part(regs, stoff):
        s1, s2 = T0 + 2, T0 + 3
        for i in range(16):
            A("v_dot2_f32_bf16 v%d, v%d, v%d, %s", s1, regs + i, ONEF, "v%d" % s1 if i else "0")
            A("v_dot2_f32_bf16 v%d, v%d, v%d, %s", s2, regs + i, regs + i, "v%d" % s2 if i else "0")
            if i % 2 == 1: yield
        A("s_lshl_b32 s%d, s%d, 2", sT, sW)
        A("s_add_u32 s%d, s%d, %d", sT, sT, STATS + stoff)
        A("v_lshlrev_b32 v%d, 5, v0", T0)
        A("v_permlane32_swap_b32 v%d, v%d", s1, s2)
        A("v_add_u32 v%d, s%d, v%d", T0, sT, T0)
        A("v_add_f32 v%d, v%d, v%d", s1, s1, s2)
        A.lds("ds_write_b32 v%d, v%d" % (T0, s1), "st")
        yield
    def stats_fin(tmp, stoff, mu, rs, second=None):
        A("v_lshlrev_b32 v%d, 5, v0", T0)
        A("v_add_u32 v%d, 0x%x, v%d", T0, STATS + stoff, T0)
        A.lds("ds_read_b128 %s, v%d" % (vr(tmp, 4), T0), "sf")
        A.lds("ds_read_b128 %s, v%d offset:16" % (vr(tmp + 4, 4), T0), "sf")
        yield
        yield
        A.wait(lg="sf")
        for i in range(4): A("v_add_f32 v%d, v%d, v%d", tmp + i, tmp + i, tmp + 4 + i)
        yield
        A("v_add_f32 v%d, v%d, v%d", tmp, tmp, tmp + 1)
        A("v_add_f32 v%d, v%d, v%d", tmp + 2, tmp + 2, tmp + 3)
        A("v_add_f32 v%d, v%d, v%d", tmp, tmp, tmp + 2)
        A("v_mul_f32 v%d, %s, v%d", tmp, f32(1.0 / 512), tmp)
        A("v_mov_b32 v%d, v%d", tmp + 1, tmp)
        yield
        A("s_nop 1")
        A("v_permlane32_swap_b32 v%d, v%d", tmp, tmp + 1)
        A("v_mov_b32 v%d, v%d", mu, tmp)
        A("v_fma_f32 v%d, -v%d, v%d, v%d", tmp + 1, tmp, tmp, tmp + 1)
        A("v_max_f32 v%d, 0, v%d", tmp + 1, tmp + 1)
        A("v_add_f32 v%d, %s, v%d", tmp + 2, f32(EPS), tmp + 1)
        yield
        A("v_rsq_f32 v%d, v%d", rs, tmp + 2)
        A("s_nop 0")
        if second is not None:
            A("v_mul_f32 v%d, v%d, v%d", tmp + 1, tmp + 1, rs)
            A("v_mul_f32 v%d, v%d, v%d", tmp + 1, tmp + 1, rs)
            A("v_add_f32 v%d, %s, v%d", tmp + 1, f32(EPS), tmp + 1)
            A("v_rsq_f32 v%d, v%d", tmp + 1, tmp + 1)
            A("s_nop 0")
            A("v_mul_f32 v%d, v%d, v%d", second, tmp + 1, rs)
        yield
    def chain(*gens):
        for g in gens:
            if g is None: continue
            for _ in g: yield
    def gemm16(wregs, side_a=None, side_b=None):
        D = 3
        def rd(k): A.lds("ds_read_b128 %s, v7 offset:%d" % (vr(BF + 4 * (k % 4), 4), 1024 * k), "b%d" % k)
        for k in range(D): rd(k)
        for k in range(16):
            if k + D < 16: rd(k + D)
            A.wait(lg="b%d" % k)
            A.mfma(ACC0, wregs[k], BF + 4 * (k % 4), ACC0 if k else None)
            sd = side_a if k < 8 else side_b
            if sd is not None:
                next(sd, None)
                if k % 2: next(sd, None)
            if k == 7 and side_a is not None:
                run(side_a)
                if side_b is not None and OPT.get("midbar", 1):
                    A.wait(lg="st"); A("s_barrier")
        if side_b is not None: run(side_b)
    def exchange(before_barrier=None):
        A("s_lshl_b32 s%d, s%d, 11", sT, sW)
        A("v_add_u32 v%d, s%d, v2", T0, sT)
        A("v_xor_b32 v%d, 0x2000, v%d", T0 + 1, T0)
        A.lds("ds_write_b128 v%d, %s" % (T0, vr(ACC0 + 8, 4)))
        A.lds("ds_write_b128 v%d, %s offset:1024" % (T0, vr(ACC0 + 12, 4)))
        if before_barrier: before_barrier()
        A.wait(lg=None)
        A("s_barrier")
        A.lds("ds_read_b128 %s, v%d" % (vr(BF, 4), T0 + 1))
        A.lds("ds_read_b128 %s, v%d offset:1024" % (vr(BF + 4, 4), T0 + 1))
        A.wait(lg=None)
        for i in range(0, 8, 2): A("v_pk_add_f32 %s, %s, %s", vr(ACC0 + i, 2), vr(ACC0 + i, 2), vr(BF + i, 2))
    def gelu(x, n, tmp, ga):
        for i in range(0, n, 2): A("v_pk_mul_f32 %s, %s, %s", vr(tmp + i, 2), vr(x + i, 2), vr(x + i, 2))
        yield
        for i in range(0, n, 2): A("v_pk_fma_f32 %s, %s, %s, %s op_sel_hi:[1,1,0]", vr(tmp + i, 2), vr(tmp + i, 2), sr(sGB, 2), vr(ga, 2))
        yield
        for i in range(0, n, 2): A("v_pk_mul_f32 %s, %s, %s", vr(tmp + i, 2), vr(tmp + i, 2), vr(x + i, 2))
        yield
        for i in range(n):
            A("v_exp_f32 v%d, v%d", tmp + i, tmp + i)
            if i % 3 == 2: yield
        A("s_nop 0")
        for i in range(0, n, 2): A("v_pk_add_f32 %s, %s, 1.0 op_sel_hi:[1,0]", vr(tmp + i, 2), vr(tmp + i, 2))
        yield
        for i in range(n):
            A("v_rcp_f32 v%d, v%d", tmp + i, tmp + i)
            if i % 3 == 2: yield
        A("s_nop 0")
        for i in range(0, n, 2): A("v_pk_mul_f32 %s, %s, %s", vr(x + i, 2), vr(x + i, 2), vr(tmp + i, 2))
        yield
    def pack8(dst, src):
        for i in range(4): A("v_cvt_pk_bf16_f32 v%d, v%d, v%d", dst + i, src + 2 * i, src + 2 * i + 1)
        A("v_min_u32 v%d, -2, v%d", dst, dst)
    def unpack8(dst, src):
        for i in range(4):
            A("v_lshlrev_b32 v%d, 16, v%d", dst + 2 * i, src + i)
            A("v_and_b32 v%d, 0xffff0000, v%d", dst + 2 * i + 1, src + i)
    TRC = XRES

    run(round_dma(("sq", sW2, 3), SLOT_B, "w2r3"))
    run(round_dma(("w3", 0), SLOT_C, "w3r0"))
    A("s_nop 0")
    colsum(CS1, [W1 + 4 * k for k in range(16)], True)
    A("s_add_u32 s%d, s%d, 0x%x", sT2, sPOLL, WS_O)
    poll([(POLL + 4 * i, 1, sWS, sT2, 1024 * i) for i in range(4)])
    stamp()
    stage_act(POLL, 0)
    A.wait(lg=None)
    A("s_barrier")
    gemm16([WO + 4 * k for k in range(16)])
    A("s_nop 8")
    def c_pre():
        unpack8(HR, XRES)
        A("v_subrev_u32 v%d, 0x10000, v5", TRC)
        run(round_tr(4, SLOT_A - SLOT_B, W2B, None, "w2b"))
        run(round_tr(4, 0, W2B + 16, None, "w2b"))
        run(round_tr(TRC, 0, W3R[0], None, "w3"))
    exchange(c_pre)
    for i in range(0, 8, 2): A("v_pk_add_f32 %s, %s, %s", vr(ACC0 + i, 2), vr(ACC0 + i, 2), vr(HR + i, 2))
    pack8(BF + 8, ACC0)
    A("s_add_u32 s%d, s%d, 0x%x", sT2, sOWN, WS_H)
    publish(BF + 8, 1, sWS, sT2, sLOCS)
    stamp()
    unpack8(HR, BF + 8)
    run(round_dma(("w3", 1), SLOT_A, "w3n"))
    run(round_dma(("w3", 2), SLOT_B, "w3n"))
    run(round_dma(("w3", 3), SLOT_C, "w3n"))
    colsum(CS3, [W3R[0] + 4 * k for k in range(4)], True)

    A("s_add_u32 s%d, s%d, 0x%x", sT2, sPOLL, WS_H)
    poll([(POLL + 4 * i, 1, sWS, sT2, 1024 * i) for i in range(4)])
    stamp()
    stage_act(POLL, 0)
    A.wait(lg=None)
    A("s_barrier")
    gemm16([W1 + 4 * k for k in range(16)], stats_part(POLL, 0), stats_fin(POLL, 0, MU, R1, R12))
    A("s_nop 11")
    for i in range(8, 16, 2):
        A("v_pk_fma_f32 %s, %s, %s, %s op_sel_hi:[1,0,1] neg_lo:[0,1,0] neg_hi:[0,1,0]", vr(ACC0 + i, 2), vr(CS1 + i, 2), vr(MU, 2), vr(ACC0 + i, 2))
    def d_pre():
        for i in range(0, 8, 2):
            A("v_pk_fma_f32 %s, %s, %s, %s op_sel_hi:[1,0,1] neg_lo:[0,1,0] neg_hi:[0,1,0]", vr(ACC0 + i, 2), vr(CS1 + i, 2), vr(MU, 2), vr(ACC0 + i, 2))
        run(round_tr(5, SLOT_A - SLOT_B, W3R[1], None, "w3"))
        run(round_tr(5, 0, W3R[2], None, "w3"))
        run(round_tr(TRC, 0, W3R[3], None, "w3"))
        A("v_mov_b32 v%d, %s", XRES + 2, f32(GA))
    exchange(d_pre)
    for i in range(0, 8, 2): A("v_pk_mul_f32 %s, %s, %s op_sel_hi:[1,0]", vr(ACC0 + i, 2), vr(ACC0 + i, 2), vr(R12, 2))
    run(gelu(ACC0, 8, BF, XRES + 2))
    pack8(BF + 8, ACC0)
    publish(BF + 8, 1, sHH, sOWN, sLOCN)
    stamp()
    run(round_dma(("w3", 4), SLOT_A, "w3n"))
    run(round_dma(("w3", 5), SLOT_B, "w3n"))
    run(round_dma(("w3", 6), SLOT_C, "w3n"))
    colsum(CS3, [W3R[r] + 4 * k for r in (1, 2, 3) for k in range(4)], False)
    for i in range(0, 8, 2): A("v_pk_add_f32 %s, %s, %s op_sel_hi:[1,0] neg_lo:[0,1] neg_hi:[0,1]", vr(CS1 + i, 2), vr(HR + i, 2), vr(MU, 2))
    for i in range(0, 8, 2): A("v_pk_mul_f32 %s, %s, %s op_sel:[0,1] op_sel_hi:[1,1]", vr(CS1 + i, 2), vr(CS1 + i, 2), vr(MU, 2))

    A("s_lshr_b32 s%d, s%d, 2", sT, sW)
    A("s_add_u32 s%d, s%d, 1", sT, sT)
    A("s_sub_u32 s%d, 0, s%d", sT2, sT)
    A("s_bitcmp1_b32 s%d, 1", sW)
    A("s_cselect_b32 s%d, s%d, s%d", sT, sT, sT2)
    A("s_lshl_b32 s%d, s%d, 5", sT2, sg)
    A("s_add_u32 s%d, s%d, s%d", sT, sT, sT2)
    A("v_and_b32 v%d, 31, v0", T0 + 1)
    A("v_add_u32 v%d, s%d, v%d", T0 + 1, sT, T0 + 1)
    A("v_ashrrev_i32 v%d, 5, v%d", T0 + 2, T0 + 1)
    A("v_lshlrev_b32 v%d, 15, v%d", T0 + 2, T0 + 2)
    A("v_and_b32 v%d, 31, v%d", T0 + 1, T0 + 1)
    A("v_lshl_add_u32 v%d, v%d, 4, v%d", T0 + 1, T0 + 1, T0 + 2)
    A("v_and_b32 v%d, 32, v0", T0 + 2)
    A("v_lshl_add_u32 v%d, v%d, 4, v%d", T0 + 1, T0 + 2, T0 + 1)
    A("v_min_u32 v%d, 0x7fff0000, v%d", T0 + 1, T0 + 1)
    poll([(POLL + 4 * i, T0 + 1, sHH, sSTG, 1024 * i) for i in range(4)])
    stamp()
    stage_act(POLL, 0)
    run(round_tr(5, SLOT_A - SLOT_B, W3R[4], None, "w3"))
    A.wait(lg=None)
    A("s_barrier")
    run(round_dma(("w3", 7), SLOT_A, "w3n"))
    gemm16([W2A + 4 * k for k in range(8)] + [W2B + 4 * k for k in range(8)])
    A("s_nop 8")
    def e_pre():
        run(round_tr(5, 0, W3R[5], "none", "w3"))
        run(round_tr(TRC, 0, W3R[6], "none", "w3"))
    exchange(e_pre)
    for i in range(0, 8, 2): A("v_pk_add_f32 %s, %s, %s", vr(ACC0 + i, 2), vr(ACC0 + i, 2), vr(CS1 + i, 2))
    pack8(BF + 8, ACC0)
    A("s_add_u32 s%d, s%d, 0x%x", sT2, sOWN, WS_X1)
    publish(BF + 8, 1, sWS, sT2, sLOCS)
    stamp()
    unpack8(BF, BF + 8)
    for i in range(0, 8, 2): A("v_pk_add_f32 %s, %s, %s", vr(HR + i, 2), vr(HR + i, 2), vr(BF + i, 2))
    run(round_tr(5, SLOT_A - SLOT_B, W3R[7], "w3n", "w3"))
    run(round_dma(("w4", 0), SLOT_B, "w4r0"))
    colsum(CS3, [W3R[r] + 4 * k for r in (4, 5, 6) for k in range(4)], False)
    A.wait(lg=None)
    run(round_dma(("w4", 1), SLOT_A, "w4r1"))
    colsum(CS3, [W3R[7] + 4 * k for k in range(4)], False)

    A("s_lshl_b32 s%d, s%d, 16", sT2, sG)
    A("s_add_u32 s%d, s%d, s%d", sT2, sT2, sSTG)
    A("s_add_u32 s%d, s%d, 0x%x", sT2, sT2, WS_X1)
    A("s_add_u32 s%d, s%d, 0x8000", sT3, sT2)
    poll([(POLL + 4 * i, 1, sWS, sT2, 1024 * i) for i in range(4)] + [(POLL2 + 4 * i, 1, sWS, sT3, 1024 * i) for i in range(4)])
    stamp()
    stage_act(POLL, 0)
    stage_act(POLL2, 32768)
    A.wait(lg=None)
    A("s_barrier")
    w3regs = [W3R[k // 4] + 4 * (k % 4) for k in range(32)]
    W4R = [POLL, POLL2, W3R[0], W3R[1], W3R[2], W3R[3], W3R[4]]
    MUB = 82
    def f_epi(acc, mupair, mt, tmp):
        for i in range(0, 16, 2):
            A("v_pk_fma_f32 %s, %s, %s, %s op_sel_hi:[1,0,1] neg_lo:[0,1,0] neg_hi:[0,1,0]", vr(acc + i, 2), vr(CS3 + i, 2), vr(mupair, 2), vr(acc + i, 2))
            if i % 4: yield
        for i in range(0, 16, 2):
            A("v_pk_mul_f32 %s, %s, %s op_sel:[0,1] op_sel_hi:[1,1]", vr(acc + i, 2), vr(acc + i, 2), vr(mupair, 2))
            if i % 4: yield
        for hf in range(2):
            for _ in gelu(acc + 8 * hf, 8, tmp, XRES + 2): yield
            for i in range(4): A("v_cvt_pk_bf16_f32 v%d, v%d, v%d", acc + 8 * hf + i, acc + 8 * hf + 2 * i, acc + 8 * hf + 2 * i + 1)
            yield
        A("s_lshl_b32 s%d, s%d, 11", sT, sW)
        A("v_add_u32 v%d, s%d, v2", T0, sT)
        A("s_cmp_eq_u32 s%d, 7", sW)
        A("s_cselect_b64 exec, 0, -1")
        A.lds("ds_write_b128 v%d, %s offset:%d" % (T0, vr(acc, 4), mt * 14 * 1024))
        A.lds("ds_write_b128 v%d, %s offset:%d" % (T0, vr(acc + 8, 4), mt * 14 * 1024 + 1024))
        A("s_mov_b64 exec, -1")
        yield
    def f_pass(acc, off, side, per, hooks=None):
        D = 3
        def rd(k): A.lds("ds_read_b128 %s, v1 offset:%d" % (vr(BF + 4 * (k % 4), 4), off + 1024 * k), "b%d" % k)
        for k in range(D): rd(k)
        for k in range(32):
            if k + D < 32: rd(k + D)
            A.wait(lg="b%d" % k)
            A.mfma(acc, w3regs[k], BF + 4 * (k % 4), acc if k else None)
            if hooks and k in hooks: hooks[k]()
            for _ in range(per): next(side, None)
        run(side)
    def midbar():
        A.wait(lg="st"); A("s_barrier"); yield
    TMPF = XRES + 4
    side0 = chain(stats_part(POLL, 0), stats_part(POLL2, 2048), midbar(),
                  stats_fin(POLL, 0, MU, R1), stats_fin(POLL, 2048, MUB, MUB + 1),
                  round_tr(5, 0, W4R[0], "w4r0", "w4a"), round_tr(5, SLOT_A - SLOT_B, W4R[1], "w4r1", "w4b"))
    f_pass(ACC0, 0, side0, 2)
    A.wait(lg=None)
    run(round_dma(("w4", 2), SLOT_B, "w4r2"))
    run(round_dma(("w4", 3), SLOT_A, "w4r3"))
    GT = W3R[0]
    def late(gen, skip):
        for _ in range(skip): yield
        for _ in gen: yield
    hooks = {}
    def h_r2():
        run(round_tr(5, 0, W4R[3], "w4r2", "w4c")); A.wait(lg="w4c"); run(round_dma(("w4", 4), SLOT_B, "w4r4"))
    def h_r3():
        run(round_tr(5, SLOT_A - SLOT_B, W4R[4], "w4r3", "w4d")); A.wait(lg="w4d"); run(round_dma(("w4", 5), SLOT_A, "w4r5"))
    def h_r4():
        run(round_tr(5, 0, W4R[5], "w4r4", "w4e")); A.wait(lg="w4e"); run(round_dma(("w4", 6), SLOT_B, "w4r6"))
    def h_r5():
        run(round_tr(5, SLOT_A - SLOT_B, W4R[6], "w4r5", "w4f"))
    hooks = {9: h_r2, 13: h_r3, 24: h_r4, 29: h_r5}
    f_pass(ACC1, 32768, late(f_epi(ACC0, MU, 0, GT), 10), 2, hooks)
    A("s_nop 11")
    run(f_epi(ACC1, MUB, 1, GT))
    run(round_tr(5, 0, W4R[2], "w4r6", "w4g"))
    A.wait(lg=None)
    A("s_barrier")
    stamp()
    w4reg = {0: W4R[0], 1: W4R[1], 2: W4R[3], 3: W4R[4], 4: W4R[5], 5: W4R[6], 6: W4R[2]}

    GACC = {(0, 0): ACC0, (0, 1): ACC1, (1, 0): W3R[5], (1, 1): W3R[6]}
    def rdg(k):
        for mt in range(2):
            A.lds("ds_read_b128 %s, v2 offset:%d" % (vr(BF + 8 * (k % 2) + 4 * mt, 4), (mt * 14 + k) * 1024), "g%d" % k)
    rdg(0)
    for k in range(14):
        if k + 1 < 14: rdg(k + 1)
        A.wait(lg="g%d" % k)
        for nt in range(2):
            for mt in range(2):
                a = GACC[(nt, mt)]
                A.mfma(a, w4reg[k // 2] + 8 * (k % 2) + 4 * nt, BF + 8 * (k % 2) + 4 * mt, a if k else None)
    A("s_nop 7")
    for nt in range(2):
        for mt in range(2):
            a = GACC[(nt, mt)]
            for hf in range(2):
                pack8(a + 8 * hf, a + 8 * hf)
                A("s_add_u32 s%d, s%d, 0x%x", sT2, sPRT, mt * 32 * 8192 + (2 * nt + hf) * 8192)
                publish(a + 8 * hf, 1, sWS, sT2, sLOCS)
    stamp()
    PR = W3R[1]
    A("s_lshl_b32 s%d, s%d, 3", sT2, sOWN)
    A("s_add_u32 s%d, s%d, 0x%x", sT2, sT2, WS_PART)
    A("s_add_u32 s%d, s%d, 4096", sT3, sT2)
    A("v_mov_b32 v%d, 0x3f80", ONEF)
    A("v_mov_b32 v%d, 0x3f800000", ONEF + 1)
    poll([(PR + 4 * i, 1, sWS, sT2 if i < 4 else sT3, 1024 * (i % 4)) for i in range(8)])
    stamp()
    for p in range(8):
        for i in range(4):
            A("v_dot2_f32_bf16 v%d, v%d, v%d, v%d", HR + 2 * i, PR + 4 * p + i, ONEF, HR + 2 * i)
            A("v_dot2_f32_bf16 v%d, v%d, v%d, v%d", HR + 2 * i + 1, PR + 4 * p + i, ONEF + 1, HR + 2 * i + 1)
    rowmajor_off(7, T0)
    for i in range(4): A("v_cvt_pk_bf16_f32 v%d, v%d, v%d", BF + i, HR + 2 * i, HR + 2 * i + 1)
    A("buffer_store_dwordx4 %s, v7, %s, s%d offen" % (vr(BF, 4), sr(sOUT, 4), sT2))
    if OPT["stamps"]:
        A("s_waitcnt vmcnt(0)")
        stamp()
        n = nstamp[0]
        A("s_lshl_b32 s%d, s%d, 3", sT, sL)
        A("s_add_u32 s%d, s%d, s%d", sT, sT, sW)
        A("s_lshl_b32 s%d, s%d, 6", sT, sT)
        A("s_add_u32 s%d, s%d, 0x%x", sT, sT, WS_STAMP)
        A("v_mov_b32 v8, 0")
        for i in range(n):
            A("v_mov_b32 v9, s%d", sSTAMP + 2 * i)
            A("buffer_store_dword v9, v8, %s, s%d offen offset:%d" % (sr(sWS, 4), sT, 4 * i))
    A("s_waitcnt vmcnt(0)")
    A.label("K2_end")
    A("s_endpgm")

    A.label("L_slow")
    MX = T0; AD = T0 + 1
    A("v_mov_b32 v%d, 0xff800000", MX)
    A("v_mov_b32 v%d, v1", AD)
    A("s_mov_b32 s%d, 0", sCNT)
    A.label("L_slow1")
    A("ds_read_b128 %s, v%d" % (vr(KF[0], 4), AD))
    A("s_waitcnt lgkmcnt(0)")
    A.mfma(S[0], KF[0], Q)
    A("v_add_u32 v%d, 2048, v%d", AD, AD)
    A("s_add_u32 s%d, s%d, 1", sCNT, sCNT)
    A("s_nop 11")
    for i in range(0, 16, 2): A("v_max3_f32 v%d, v%d, v%d, v%d", MX, MX, S[0] + i, S[0] + i + 1)
    A("s_cmp_lt_u32 s%d, 64", sCNT)
    A("s_cbranch_scc1 L_slow1")
    A("v_mov_b32 v%d, v%d", AD, MX)
    A("s_nop 1")
    A("v_permlane32_swap_b32 v%d, v%d", MX, AD)
    A("v_max_f32 v%d, v%d, v%d", MX, MX, AD)
    for i in range(16): A("v_sub_f32 v%d, 0, v%d", S[1] + i, MX)
    for i in range(16): A("v_mov_b32 v%d, 0", ACC + i)
    A("v_mov_b32 v%d, v1", AD)
    A("s_mov_b32 s%d, 0", sCNT)
    A.label("L_slow2")
    A("ds_read_b128 %s, v%d" % (vr(KF[0], 4), AD))
    A("s_mov_b64 exec, %s", sr(sVM, 2))
    A("ds_read_b128 %s, v%d offset:1024" % (vr(VF[0], 4), AD))
    A("ds_read_b128 %s, v%d offset:768" % (vr(VF[0] + 4, 4), AD))
    A("s_mov_b64 exec, -1")
    A("s_waitcnt lgkmcnt(0)")
    A.mfma(S[0], KF[0], Q, S[1])
    A("v_add_u32 v%d, 2048, v%d", AD, AD)
    A("s_add_u32 s%d, s%d, 1", sCNT, sCNT)
    A("s_nop 11")
    for i in range(16): A("v_exp_f32 v%d, v%d", S[0] + i, S[0] + i)
    A("s_nop 0")
    for i in range(8): A("v_cvt_pk_bf16_f32 v%d, v%d, v%d", S[0] + i, S[0] + 2 * i, S[0] + 2 * i + 1)
    A("s_nop 1")
    A.mfma(ACC, VF[0], S[0], ACC)
    A.mfma(ACC, VF[0] + 4, S[0] + 4, ACC)
    A("s_nop 3")
    A("s_cmp_lt_u32 s%d, 64", sCNT)
    A("s_cbranch_scc1 L_slow2")
    A("s_nop 11")
    A("s_branch L_attn_done")
    return A, 163840, 256
```

```python
import re
def regs(tok):
    tok = tok.strip()
    tok = tok.lstrip("-")
    if tok.startswith("abs("): tok = tok[4:-1]
    if tok.startswith("|"): tok = tok.strip("|")
    m = re.fullmatch(r"([vsa])(\d+)", tok)
    if m: return {(m.group(1), int(m.group(2)))}
    m = re.fullmatch(r"([vsa])\[(\d+):(\d+)\]", tok)
    if m: return {(m.group(1), i) for i in range(int(m.group(2)), int(m.group(3)) + 1)}
    if tok == "vcc": return {("s", 106), ("s", 107)}
    if tok == "exec": return {("s", 126), ("s", 127)}
    if tok == "m0": return {("s", 124)}
    return set()
TRANS = ("v_exp_f32", "v_rcp_f32", "v_rsq_f32", "v_log_f32", "v_sqrt_f32")
def parse(line):
    s = line.split(";")[0].strip()
    if not s or s.endswith(":") or s.startswith("."): return None
    p = s.split(None, 1)
    op = p[0]; rest = p[1] if len(p) > 1 else ""
    toks = [t.strip() for t in re.split(r",(?![^\[]*\])", rest)]
    mods = ""
    if toks:
        lp = toks[-1].split()
        if lp:
            toks[-1] = lp[0]; mods = " ".join(lp[1:])
    return op, toks, mods
def analyze(op, toks, mods):
    d = dict(op=op, w=set(), r=set(), kind="other", srcC=set(), srcAB=set(), data=set())
    base = op.replace("_e64", "").replace("_e32", "").replace("_dpp", "")
    if op.startswith("v_mfma"):
        d["kind"] = "mfma"; d["w"] = regs(toks[0]); d["srcAB"] = regs(toks[1]) | regs(toks[2]); d["srcC"] = regs(toks[3])
        d["r"] = d["srcAB"] | d["srcC"]; d["passes"] = 8 if "32x32" in op else 4
    elif op.startswith("v_cmp"):
        d["kind"] = "valu"; d["w"] = regs(toks[0]); [d["r"].update(regs(t)) for t in toks[1:]]
    elif op.startswith("v_readfirstlane") or op.startswith("v_readlane"):
        d["kind"] = "valu"; d["rl"] = True; d["w"] = regs(toks[0]); [d["r"].update(regs(t)) for t in toks[1:]]
    elif op.startswith("v_permlane"):
        d["kind"] = "valu"; d["perm"] = True; d["w"] = regs(toks[0]) | regs(toks[1]); d["r"] = set(d["w"])
    elif op.startswith("v_"):
        d["kind"] = "valu"; d["w"] = regs(toks[0]); [d["r"].update(regs(t)) for t in toks[1:]]
        if base in ("v_fmac_f32", "v_dot2c_f32_bf16"): d["r"] |= d["w"]
        if base in TRANS: d["trans"] = True
        if "dot2" in base: d["dot"] = True; d["dotC"] = regs(toks[3]) if len(toks) > 3 else d["w"]
        if "dpp" in op or "quad_perm" in mods or "row_" in mods: d["dpp"] = True
        if "_co_" in op: d["w"] |= regs(toks[1])
    elif op.startswith("ds_read"):
        d["kind"] = "lds"; d["w"] = regs(toks[0]); d["r"] = regs(toks[1])
    elif op.startswith("ds_"):
        d["kind"] = "lds"; [d["r"].update(regs(t)) for t in toks]
    elif op.startswith("buffer_load") or op.startswith("global_load"):
        d["kind"] = "vmem"
        if "lds" in mods.split() or "_lds_" in op:
            [d["r"].update(regs(t)) for t in toks]; d["dma"] = True
        else:
            d["w"] = regs(toks[0]); [d["r"].update(regs(t)) for t in toks[1:]]
    elif op.startswith("buffer_store") or op.startswith("buffer_atomic") or op.startswith("global_store") or op.startswith("global_atomic"):
        d["kind"] = "vmem"; [d["r"].update(regs(t)) for t in toks]
        if "x4" in op or "x3" in op: d["data"] = regs(toks[0]) if op.startswith("buffer") else regs(toks[1])
    elif op.startswith("s_"):
        d["kind"] = "salu"
        if op == "s_nop": d["nop"] = int(toks[0], 0) + 1
        elif op.startswith("s_cmp") or op.startswith("s_cbranch") or op in ("s_branch", "s_barrier", "s_waitcnt", "s_setprio", "s_endpgm", "s_sleep"):
            [d["r"].update(regs(t)) for t in toks]
        else:
            d["w"] = regs(toks[0]); [d["r"].update(regs(t)) for t in toks[1:]]
    return d
def check(text):
    ins = []
    for n, line in enumerate(text.split("\n"), 1):
        if not line.startswith("    "): continue
        p = parse(line)
        if p is None: continue
        d = analyze(*p); d["line"] = n; d["txt"] = line.strip(); ins.append(d)
    probs = []
    for i, c in enumerate(ins):
        dist = 0
        for j in range(i - 1, max(-1, i - 24), -1):
            p = ins[j]
            need = 0; why = ""
            pv = {x for x in p["w"] if x[0] in "va"}; ps = {x for x in p["w"] if x[0] == "s"}
            if p["kind"] == "mfma":
                n12 = 12 if p["passes"] == 8 else 8
                if c["kind"] == "mfma":
                    if c["srcAB"] & p["w"]: need, why = n12, "mfma D -> mfma A/B"
                    elif c["srcC"] & p["w"] and c["srcC"] != p["w"]: need, why = n12 - 2, "mfma D -> overlapping C"
                elif c["kind"] in ("valu", "lds", "vmem") and ((c["r"] | c["w"]) & p["w"]): need, why = n12, "mfma D -> valu/mem"
                if c["kind"] == "valu" and (c["w"] & p["srcC"]) and need < 7: need, why = (7 if p["passes"] == 8 else 3), "mfma C WAR"
            elif p["kind"] == "valu":
                if c["kind"] == "mfma" and (c["r"] & pv): need, why = 2, "valu -> mfma"
                if c["kind"] == "valu":
                    if p.get("trans") and not c.get("trans") and (c["r"] & pv): need, why = max(need, 1), "trans -> valu"
                    if c.get("dpp") and (c["r"] & pv): need, why = max(need, 2), "valu -> dpp"
                    if c.get("perm") and (c["r"] & pv): need, why = max(need, 2), "valu -> permlane"
                    if c.get("rl") and (c["r"] & pv): need, why = max(need, 1), "valu -> readlane"
                    if c["r"] & ps: need, why = max(need, 4 if c.get("rl") else 2), "valu sgpr -> valu"
                    if p.get("dot") and ((c["r"] | c["w"]) & pv):
                        same = c["op"] == p["op"] and not ((c["r"] - c.get("dotC", set())) & pv)
                        if not same: need, why = max(need, 3), "dot -> other"
                if p.get("dot") and c["kind"] in ("lds", "vmem", "mfma") and (c["r"] & pv): need, why = max(need, 3), "dot -> other"
                if p.get("trans") and c["kind"] in ("lds", "vmem") and (c["r"] & pv): need, why = max(need, 1), "trans -> mem"
                if c["kind"] == "vmem" and (c["r"] & ps): need, why = max(need, 5), "valu sgpr -> vmem"
            elif p["kind"] == "vmem":
                if p["data"] and (c["w"] & p["data"]): need, why = (2 if c["kind"] in ("valu", "mfma") else 1), "store data WAR"
            elif p["kind"] == "salu":
                if ("s", 124) in p["w"] and c.get("dma"): need, why = 1, "m0 -> dma"
            if need > dist:
                probs.append("line %d: %s  <-- line %d: %s : %s needs %d has %d" % (c["line"], c["txt"], p["line"], p["txt"], why, need, dist))
            dist += p.get("nop", 1)
            if dist >= 20: break
    return probs
if __name__ == "__main__":
    import sys
    for p in check(open(sys.argv[1]).read()): print(p)
```

```python
import sys, os, struct
sys.path.insert(0, os.path.dirname(os.path.abspath(__file__)))
from asmlib import *
import hazard

NAME = "sequential_preLN__grouped_kv_mqa__mixer_s_mlp__prompt"
OPT = dict(local=1, stamps=0, align=1)
for a in sys.argv[1:]:
    if "=" in a:
        k, v = a.split("="); OPT[k] = int(v) if v.lstrip("-").isdigit() else v

def f32(x): return "0x%08x" % struct.unpack("<I", struct.pack("<f", x))[0]
LOG2E = 1.4426950408889634
QSCALE = 0.25 * LOG2E
GA = -2.0 * LOG2E * 0.7978845608028654
GB = GA * 0.044715
EPS = 1e-5
ONES = 0x3f803f80
WS_QF, WS_KV, WS_O, WS_H, WS_HH, WS_X1, WS_PART, WS_END = 0x0, 0x200000, 0x400000, 0x600000, 0x800000, 0xA00000, 0x1000000, 0x2000000
WS_STAMP = 0xC00000
POLL_LIMIT = 200000

def srd(A, d, b, nbytes):
    A("s_mov_b32 s%d, s%d", d, b)
    A("s_mov_b32 s%d, s%d", d + 1, b + 1)
    A("s_mov_b32 s%d, 0x%x", d + 2, nbytes)
    A("s_mov_b32 s%d, 0x00020000", d + 3)

def tr_lane(A, dst, lane, tmp, rowb):
    sh = {64: 6, 32: 5}[rowb]
    A("v_lshrrev_b32 v%d, 5, v%d", dst, lane)
    A("v_lshlrev_b32 v%d, %d, v%d", dst, sh + 3, dst)
    A("v_bfe_u32 v%d, v%d, 2, 2", tmp, lane)
    A("v_lshl_add_u32 v%d, v%d, %d, v%d", dst, tmp, sh, dst)
    A("v_and_b32 v%d, 1, v%d", tmp, lane)
    A("v_lshl_add_u32 v%d, v%d, 4, v%d", dst, tmp, dst)
    A("v_bfe_u32 v%d, v%d, 1, 1", tmp, lane)
    A("v_lshl_add_u32 v%d, v%d, 3, v%d", dst, tmp, dst)

def gen_k1():
    A = Asm()
    XN, WQ0, WKV0 = 0, 67584, 133120
    EX, EX2 = WQ0, WQ0 + 16384
    sX, sWQ, sWKV, sWS = 4, 8, 12, 16
    sL, sG, sJJ, sW, sT, sT2, sKH, sNT, sMT, sKVW = 20, 21, 22, 23, 24, 25, 26, 27, 28, 29
    A("s_cmp_ge_u32 s2, 256")
    A("s_cbranch_scc1 K1_end")
    A("s_load_dwordx8 s[32:39], s[0:1], 0")
    A("s_load_dwordx2 s[40:41], s[0:1], 96")
    A("v_and_b32 v1, 63, v0")
    A("v_lshrrev_b32 v2, 6, v0")
    A("s_and_b32 s%d, s2, 7", sT)
    A("v_readfirstlane_b32 s%d, v2", sW)
    A("s_lshl_b32 s%d, s%d, 5", sT, sT)
    A("s_lshr_b32 s%d, s2, 3", sT2)
    A("s_add_u32 s%d, s%d, s%d", sL, sT, sT2)
    A("s_lshr_b32 s%d, s%d, 3", sG, sL)
    A("s_and_b32 s%d, s%d, 7", sJJ, sL)
    A("s_and_b32 s%d, s%d, 1", sKH, sW)
    A("s_bfe_u32 s%d, s%d, 0x10001", sNT, sW)
    A("s_lshr_b32 s%d, s%d, 2", sMT, sW)
    A("v_lshrrev_b32 v2, 3, v1")
    A("v_and_b32 v3, 7, v1")
    A("v_lshlrev_b32 v4, 10, v2")
    A("v_lshl_add_u32 v4, v3, 4, v4")
    A("v_lshrrev_b32 v5, 2, v1")
    A("v_lshlrev_b32 v5, 10, v5")
    A("v_and_b32 v6, 3, v1")
    A("v_lshl_add_u32 v5, v6, 4, v5")
    A("v_lshlrev_b32 v6, 4, v1")
    A("s_waitcnt lgkmcnt(0)")
    srd(A, sX, 32, 2048 * 512 * 2)
    srd(A, sWQ, 34, 512 * 512 * 2)
    A("s_cmp_lt_u32 s%d, 2", sJJ)
    A("s_cselect_b32 s%d, s36, s38", sWKV)
    A("s_cselect_b32 s%d, s37, s39", sWKV + 1)
    A("s_mov_b32 s%d, 0x%x", sWKV + 2, 512 * 16 * 2)
    A("s_mov_b32 s%d, 0x00020000", sWKV + 3)
    srd(A, sWS, 40, WS_END)
    A("s_lshl_b32 s%d, s%d, 3", sT, sG)
    A("s_add_u32 s%d, s%d, s%d", sT, sT, sW)
    A("s_lshl_b32 s%d, s%d, 13", sT, sT)
    for i in range(8):
        A.vmem("buffer_load_dwordx4 %s, v4, %s, s%d offen offset:%d" % (vr(16 + 4 * i, 4), sr(sX, 4), sT, 128 * i), "x")
    A("s_lshl_b32 s%d, s%d, 11", sT, sW)
    A("s_add_u32 m0, s%d, %d", sT, WKV0)
    A("s_nop 0")
    for i in range(2):
        A.vmem("buffer_load_dwordx4 v6, %s, s%d offen offset:%d lds" % (sr(sWKV, 4), sT, 1024 * i), "w")
    A("s_lshr_b32 s%d, s%d, 1", sT, sW)
    A("s_lshl_b32 s30, s%d, 13", sT)
    A("s_lshl_b32 s31, s%d, 15", sKH)
    A("s_add_u32 s30, s30, s31")
    A("s_add_u32 s30, s30, %d", WQ0)
    A("s_lshl_b32 s%d, s%d, 17", sT, sT)
    A("s_lshl_b32 s31, s%d, 7", sJJ)
    A("s_add_u32 s%d, s%d, s31", sT, sT)
    A("s_lshl_b32 s31, s%d, 6", sKH)
    A("s_add_u32 s%d, s%d, s31", sT, sT)
    for i in range(8):
        if i % 4 == 0:
            A("s_add_u32 m0, s30, %d", 1024 * i)
        A("s_add_u32 s31, s%d, %d", sT, i * 16384 - (i % 4) * 1024)
        A.vmem("buffer_load_dwordx4 v5, %s, s31 offen offset:%d lds" % (sr(sWQ, 4), (i % 4) * 1024), "w")
    A("s_mul_i32 s%d, s%d, 33792", sT, sMT)
    A("s_and_b32 s%d, s%d, 3", sT2, sW)
    A("s_lshl_b32 s%d, s%d, 7", sT2, sT2)
    A("s_add_u32 s%d, s%d, s%d", sT2, sT2, sT)
    A("v_mul_u32_u24 v7, 528, v3")
    A("v_lshl_add_u32 v7, v2, 4, v7")
    A("v_add_u32 v7, s%d, v7", sT2)
    A("v_lshrrev_b32 v8, 5, v1")
    A("v_mul_u32_u24 v8, 528, v8")
    A("v_and_b32 v9, 31, v1")
    A("v_lshl_add_u32 v8, v9, 4, v8")
    A("s_mul_i32 s%d, s%d, %d", sT2, sKH, 16 * 1056)
    A("s_add_u32 s%d, s%d, s%d", sT2, sT2, sT)
    A("v_add_u32 v8, s%d, v8", sT2)
    tr_lane(A, 9, 1, 10, 64)
    A("v_bfe_u32 v10, v1, 4, 1")
    A("v_xor_b32 v10, s%d, v10", sKH)
    A("v_lshl_add_u32 v9, v10, 5, v9")
    A("s_lshl_b32 s%d, s%d, 15", sT, sNT)
    A("s_lshl_b32 s%d, s%d, 14", sT2, sKH)
    A("s_add_u32 s%d, s%d, s%d", sT, sT, sT2)
    A("s_add_u32 s%d, s%d, %d", sT, sT, WQ0)
    A("v_add_u32 v9, s%d, v9", sT)
    tr_lane(A, 10, 1, 11, 32)
    A("s_lshl_b32 s%d, s%d, 13", sT, sKH)
    A("s_lshl_b32 s%d, s%d, 12", sT2, sNT)
    A("s_add_u32 s%d, s%d, s%d", sT, sT, sT2)
    A("s_add_u32 s%d, s%d, %d", sT, sT, WKV0)
    A("v_add_u32 v10, s%d, v10", sT)
    A("s_and_b32 s%d, s%d, 1", sT, sJJ)
    A("s_cmp_eq_u32 s%d, s%d", sT, sMT)
    A("s_cselect_b32 s%d, 1, 0", sKVW)
    A("s_cmp_lt_u32 s%d, 4", sJJ)
    A("s_cselect_b32 s%d, s%d, 0", sKVW, sKVW)
    A("v_mov_b32 v11, 0x%x", ONES)
    A("v_mov_b32 v12, 0")
    A("v_mov_b32 v13, 0")
    A.wait(vm="x")
    for i in range(32):
        A("v_dot2_f32_bf16 v12, v%d, v11, v12", 16 + i)
        A("v_dot2_f32_bf16 v13, v%d, v%d, v13", 16 + i, 16 + i)
    A("s_nop 2")
    for mod in ("quad_perm:[1,0,3,2]", "quad_perm:[2,3,0,1]", "row_half_mirror"):
        A("v_add_f32_dpp v12, v12, v12 %s row_mask:0xf bank_mask:0xf", mod)
        A("v_add_f32_dpp v13, v13, v13 %s row_mask:0xf bank_mask:0xf", mod)
        A("s_nop 0")
    A("v_mul_f32 v12, %s, v12", f32(1.0 / 512))
    A("v_mul_f32 v13, %s, v13", f32(1.0 / 512))
    A("v_fma_f32 v13, -v12, v12, v13")
    A("v_max_f32 v13, 0, v13")
    A("v_add_f32 v13, %s, v13", f32(EPS))
    A("v_rsq_f32 v14, v13")
    A("s_nop 0")
    A("v_mov_b32 v15, v14")
    A("v_mul_f32 v12, v12, v14")
    A("v_sub_f32 v12, 0, v12")
    A("v_mov_b32 v13, v12")
    for i in range(8):
        for d in range(4):
            r = 16 + 4 * i + d
            t = 48 + 2 * d
            A("v_lshlrev_b32 v%d, 16, v%d", t, r)
            A("v_and_b32 v%d, 0xffff0000, v%d", t + 1, r)
        for d in range(4):
            t = 48 + 2 * d
            A("v_pk_fma_f32 %s, %s, v[14:15], v[12:13]", vr(t, 2), vr(t, 2))
        for d in range(4):
            A("v_cvt_pk_bf16_f32 v%d, v%d, v%d", 16 + 4 * i + d, 48 + 2 * d, 49 + 2 * d)
        A.lds("ds_write_b128 v7, %s offset:%d" % (vr(16 + 4 * i, 4), 4224 * i))
    A.wait_all()
    A("s_barrier")
    ACC, ACC2, AF, BF = 16, 32, 64, 128
    A("s_cmp_eq_u32 s%d, 0", sKVW)
    A("s_cbranch_scc1 K1_q")
    A("s_lshl_b32 s%d, s%d, 3", sT, sNT)
    A("s_mul_i32 s%d, s%d, 1056", sT, sT)
    A("v_add_u32 v11, s%d, v8", sT)
    for i in range(8):
        A.lds("ds_read_b64_tr_b16 %s, v10 offset:%d" % (vr(AF + 4 * i, 2), 512 * i))
        A.lds("ds_read_b64_tr_b16 %s, v10 offset:%d" % (vr(AF + 4 * i + 2, 2), 512 * i + 128))
        A.lds("ds_read_b128 %s, v11 offset:%d" % (vr(BF + 4 * i, 4), 1056 * i))
    A.wait(lg=None)
    A("s_cmp_lt_u32 s%d, 2", sJJ)
    A("s_cbranch_scc0 K1_v")
    for i in range(8):
        A.mfma(ACC2, AF + 4 * i, BF + 4 * i, ACC2 if i else None)
    A("s_branch K1_q")
    A.label("K1_v")
    for i in range(8):
        A.mfma(ACC2, BF + 4 * i, AF + 4 * i, ACC2 if i else None)
    A.label("K1_q")
    def rd(i):
        A.lds("ds_read_b64_tr_b16 %s, v9 offset:%d" % (vr(AF + 4 * i, 2), 1024 * i), i)
        A.lds("ds_read_b64_tr_b16 %s, v9 offset:%d" % (vr(AF + 4 * i + 2, 2), 1024 * i + 256), i)
        A.lds("ds_read_b128 %s, v8 offset:%d" % (vr(BF + 4 * i, 4), 1056 * i), i)
    D = 4
    for i in range(D): rd(i)
    for i in range(16):
        if i + D < 16: rd(i + D)
        A.wait(lg=i)
        A.mfma(ACC, AF + 4 * i, BF + 4 * i, ACC if i else None)
    A("s_barrier")
    A("s_lshl_b32 s%d, s%d, 11", sT, sW)
    A("s_add_u32 s%d, s%d, %d", sT, sT, EX)
    A("v_add_u32 v11, s%d, v6", sT)
    A("v_xor_b32 v12, 0x800, v11")
    A("s_xor_b32 s%d, s%d, 1", sT, sW)
    A("s_lshl_b32 s%d, s%d, 11", sT, sT)
    A("s_add_u32 s%d, s%d, %d", sT, sT, EX)
    A("v_add_u32 v12, s%d, v6", sT)
    A("s_and_b32 s%d, s%d, 3", sT2, sW)
    A("s_lshl_b32 s%d, s%d, 12", sT, sT2)
    A("s_add_u32 s%d, s%d, %d", sT, sT, EX2)
    A("v_add_u32 v13, s%d, v6", sT)
    A("s_nop 3")
    A.lds("ds_write_b128 v11, %s" % vr(ACC + 8, 4))
    A.lds("ds_write_b128 v11, %s offset:1024" % vr(ACC + 12, 4))
    A("s_cmp_eq_u32 s%d, 0", sKVW)
    A("s_cbranch_scc1 K1_x1")
    for i in range(4):
        A("ds_write_b128 v13, %s offset:%d" % (vr(ACC2 + 4 * i, 4), 1024 * i))
    A.label("K1_x1")
    A.wait_all()
    A("s_barrier")
    A.lds("ds_read_b128 %s, v12" % vr(48, 4))
    A.lds("ds_read_b128 %s, v12 offset:1024" % vr(52, 4))
    A("s_lshl_b32 s%d, s%d, 13", sT, sL)
    A("s_lshl_b32 s31, s%d, 10", sW)
    A("s_add_u32 s%d, s%d, s31", sT, sT)
    A("s_mov_b32 s30, %s", f32(QSCALE))
    A.wait(lg=None)
    for i in range(8): A("v_add_f32 v%d, v%d, v%d", 48 + i, 48 + i, ACC + i)
    for i in range(8): A("v_mul_f32 v%d, s30, v%d", 48 + i, 48 + i)
    for i in range(4): A("v_cvt_pk_bf16_f32 v%d, v%d, v%d", 56 + i, 48 + 2 * i, 49 + 2 * i)
    A.vmem("buffer_store_dwordx4 %s, v6, %s, s%d offen offset:0" % (vr(56, 4), sr(sWS, 4), sT))
    A("s_cmp_eq_u32 s%d, 0", sKVW)
    A("s_cbranch_scc1 K1_done")
    A("s_cmp_lg_u32 s%d, 0", sT2)
    A("s_cbranch_scc1 K1_done")
    for p in range(1, 4):
        for i in range(4):
            A.lds("ds_read_b128 %s, v13 offset:%d" % (vr(64 + 16 * (p - 1) + 4 * i, 4), 4096 * p + 1024 * i))
    A.wait(lg=None)
    for p in range(3):
        for i in range(16): A("v_add_f32 v%d, v%d, v%d", ACC2 + i, ACC2 + i, 64 + 16 * p + i)
    for i in range(8): A("v_cvt_pk_bf16_f32 v%d, v%d, v%d", 64 + i, ACC2 + 2 * i, ACC2 + 2 * i + 1)
    A("s_lshl_b32 s%d, s%d, 1", sT, sG)
    A("s_add_u32 s%d, s%d, s%d", sT, sT, sMT)
    A("s_lshl_b32 s%d, s%d, 11", sT, sT)
    A("s_add_u32 s%d, s%d, 0x%x", sT, sT, WS_KV)
    A("s_cmp_lt_u32 s%d, 2", sJJ)
    A("s_cbranch_scc1 K1_st")
    A("s_add_u32 s%d, s%d, 1024", sT, sT)
    A("v_and_b32 v72, 16, v1")
    A("v_cmp_eq_u32 vcc, 0, v72")
    A("s_nop 1")
    for i in range(4): A("v_cndmask_b32 v%d, v%d, v%d, vcc", 64 + i, 64 + i, 68 + i)
    A.label("K1_st")
    A("buffer_store_dwordx4 %s, v6, %s, s%d offen" % (vr(64, 4), sr(sWS, 4), sT))
    A.label("K1_done")
    A("s_waitcnt vmcnt(0)")
    A.label("K1_end")
    A("s_endpgm")
    return A, 149504, 192

from gen_k2 import gen_k2

def kd(name, nv):
    return """.amdhsa_kernel %s
  .amdhsa_next_free_vgpr %d
  .amdhsa_next_free_sgpr 102
  .amdhsa_accum_offset %d
  .amdhsa_group_segment_fixed_size 0
  .amdhsa_kernarg_size 104
  .amdhsa_user_sgpr_count 2
  .amdhsa_user_sgpr_kernarg_segment_ptr 1
  .amdhsa_system_sgpr_workgroup_id_x 1
.end_amdhsa_kernel
""" % (name, nv, nv)

def assemble(kernels, out):
    head = open("cdna_kernels/%s.s.ref" % NAME).read().split("\n")
    hdr = [l for l in head if l.startswith(";") and "@launch" not in l and "Override" not in l and "grid=ceil" not in l]
    def build(bodies):
        s = "\n".join(hdr) + "\n"
        for (name, A, lds, nv) in kernels:
            s += "; @launch kernel=%s grid=(256,1,1) block=(512,1,1) lds=%d\n" % (name, lds)
        s += '.amdgcn_target "amdgcn-amd-amdhsa--gfx950"\n.text\n'
        for (name, A, lds, nv), body in zip(kernels, bodies):
            s += ".globl %s\n.p2align 8\n.type %s,@function\n%s:\n" % (name, name, name)
            s += "\n".join(body) + "\n"
        s += '.section .rodata,"a"\n'
        for (name, A, lds, nv) in kernels:
            s += ".p2align 6\n" + kd(name, nv)
        return s
    bodies = [A.L for (_, A, _, _) in kernels]
    if OPT["align"]:
        nb = []
        for (name, A, lds, nv) in kernels:
            tmp = '.amdgcn_target "amdgcn-amd-amdhsa--gfx950"\n.text\n' + "\n".join(A.L) + "\n"
            open("_k.s", "w").write(tmp)
            sz = [x[1] for x in inst_sizes("_k.s", "_k.o")]
            ni = sum(1 for l in A.L if is_inst(l))
            assert ni == len(sz), (ni, len(sz))
            b, npad = align8(A.L, sz)
            print("%s: %d instrs, %d bytes, %d pad nops" % (name, ni, sum(sz), npad))
            nb.append(b)
        bodies = nb
    s = build(bodies)
    open(out, "w").write(s)
    for p in hazard.check(s): print("HAZARD", p)

if __name__ == "__main__":
    k1, l1, n1 = gen_k1()
    k2, l2, n2 = gen_k2(globals())
    out = OPT.get("out", "cdna_kernels/%s.s" % NAME)
    assemble([("qkv_kernel", k1, l1, n1), (NAME + "_kernel", k2, l2, n2)], out)
```

```python
import sys, os, struct
sys.path.insert(0, os.path.dirname(os.path.abspath(__file__)))
from asmlib import *
import hazard

NAME = "sequential_preLN__grouped_kv_mqa__mixer_s_mlp__prompt"
OPT = dict(local=1, stamps=0, align=1, dbgq=0)
for a in sys.argv[1:]:
    if "=" in a:
        k, v = a.split("="); OPT[k] = int(v) if v.lstrip("-").isdigit() else v

def f32(x): return "0x%08x" % struct.unpack("<I", struct.pack("<f", x))[0]
LOG2E = 1.4426950408889634
QSCALE = 0.25 * LOG2E
GA = -2.0 * LOG2E * 0.7978845608028654
GB = GA * 0.044715
EPS = 1e-5
ONES = 0x3f803f80
WS_QF, WS_KV, WS_O, WS_H, WS_HH, WS_X1, WS_PART, WS_END = 0x0, 0x200000, 0x400000, 0x600000, 0x800000, 0xA00000, 0x1000000, 0x2000000
WS_STAMP = 0xC00000
WS_SH, WS_SX = 0xD00000, 0xD40000
WS_KVF, WS_STAT, WS_EPOCH = 0xE00000, 0xE01000, 0xE02000
TAGSTEP = 0x9E3779B8
POLL_LIMIT = 200000
KB = 1024

def gen():
    A = Asm()
    sX, sWO, sW1, sW2, sW3, sW4, sWS, sHH, sOUT = 4, 8, 12, 16, 20, 24, 28, 32, 36
    sTAG, sOWNR, sSTP = 40, 41, 42
    sWQ, sWKV = sHH, sOUT
    sL, sG, sJJ, sg, sj, sW, st, sKH, sIDX, sSTG = 44, 45, 46, 47, 48, 49, 50, 51, 52, 53
    sB512, sB3, sB4, sOWN, sOWN2, sT, sT2, sT3 = 54, 55, 56, 57, 58, 59, 60, 61
    sVM = 62
    sLOCS, sLOCN, sNIB, sCNT, sOFR, sPRT, sGB = 64, 65, 66, 67, 68, 69, 70
    sW3M = 72
    sPTR = 76
    sSTAMP = 76
    WKV0, XN, WQ0, EX2, EX = 0, 16 * KB, 16 * KB + 67584, 149504, 128 * KB
    SLOT_B, SLOT_C, ACT0, EXCH, CSX, STATS, SLOT_A = 0, 32 * KB, 64 * KB, 96 * KB, 112 * KB, 124 * KB, 128 * KB
    GBUF = EXCH
    vL16, vHI, vW, vTR, vTRA, vW3, vTCH = 1, 2, 3, 4, 5, 6, 7
    S = [8, 24]; ACC = 40; Q = 56; KF = [60, 72]; VF = [64, 76]
    WO, W1, W2A, SENT, XRES = 84, 148, 212, 244, 244
    T0 = 252
    W2B, CS = 84, 116
    W3R = [132, 148, 164, 180, 196, 212, 228, 84]
    nstamp = [0]
    def stamp(lvl=1):
        if not OPT["stamps"] or (lvl != OPT["stamps"] and lvl != 0): return
        A("s_memtime %s", sr(sSTAMP + 2 * nstamp[0], 2))
        A("s_waitcnt lgkmcnt(0)"); A.lg = []
        nstamp[0] += 1
    def srd(d, b, nbytes):
        A("s_mov_b32 s%d, s%d", d, b)
        A("s_mov_b32 s%d, s%d", d + 1, b + 1)
        A("s_mov_b32 s%d, 0x%x", d + 2, nbytes)
        A("s_mov_b32 s%d, 0x00020000", d + 3)
    def tr_lane(dst, tmp, rowb):
        sh = {64: 6, 32: 5}[rowb]
        A("v_lshrrev_b32 v%d, 5, v0", dst)
        A("v_lshlrev_b32 v%d, %d, v%d", dst, sh + 3, dst)
        A("v_bfe_u32 v%d, v0, 2, 2", tmp)
        A("v_lshl_add_u32 v%d, v%d, %d, v%d", dst, tmp, sh, dst)
        A("v_and_b32 v%d, 1, v0", tmp)
        A("v_lshl_add_u32 v%d, v%d, 4, v%d", dst, tmp, dst)
        A("v_bfe_u32 v%d, v0, 1, 1", tmp)
        A("v_lshl_add_u32 v%d, v%d, 3, v%d", dst, tmp, dst)
    def run(gen):
        for _ in gen: pass
    def chain(*gens):
        for g in gens:
            if g is None: continue
            for _ in g: yield
    def dma_block(srdreg, voff, sbase, const, lds_const, tag):
        A("s_add_u32 m0, s%d, %d", sSTG, lds_const)
        A("s_add_u32 s%d, s%d, %d", sT, sbase, const)
        A.vmem("buffer_load_dwordx4 v%d, %s, s%d offen lds" % (voff, sr(srdreg, 4), sT), tag)
    def round_dma(kind, slot, tag):
        if kind[0] == "w3": A("s_mov_b64 exec, %s", sr(sW3M, 2))
        for i in range(4):
            if kind[0] == "sq": dma_block(kind[1], vW, sB512, (4 * kind[2] + i) * 16384, slot + KB * i, tag)
            elif kind[0] == "w3": dma_block(sW3, vW3, sB3, (4 * kind[1] + i) * 16 * 3584, slot + KB * i, tag)
            else: dma_block(sW4, vW, sB4, (2 * kind[1] + (i >> 1)) * 16384 + (i & 1) * 64, slot + KB * i, tag)
        if kind[0] == "w3": A("s_mov_b64 exec, -1")
    def round_tr(slot, dst, tag_vm, tag_lg):
        A.wait(vm=tag_vm)
        base, off = (vTRA, 0) if slot == SLOT_A else (vTR, slot)
        for i in range(4):
            A.lds("ds_read_b64_tr_b16 %s, v%d offset:%d" % (vr(dst + 4 * i, 2), base, off + KB * i), tag_lg)
            A.lds("ds_read_b64_tr_b16 %s, v%d offset:%d" % (vr(dst + 4 * i + 2, 2), base, off + KB * i + 256), tag_lg)
    def publish(items, loc):
        def emit(fl, track):
            for (data, sd, soff, imm) in items:
                s = "buffer_store_dwordx4 %s, v%d, %s, s%d offen offset:%d%s" % (vr(data, 4), vL16, sr(sd, 4), soff, imm, fl)
                if track: A.vmem(s, "pub")
                else: A(s)
        if not OPT["local"]:
            emit(" sc1", True); return
        l1, l2 = A.newlabel("Lp"), A.newlabel("Lq")
        A("s_cmp_eq_u32 s%d, 1", loc)
        A("s_cbranch_scc1 %s", l1)
        emit(" sc1", False)
        A("s_branch %s", l2)
        A.label(l1)
        emit("", True)
        A.label(l2)
    def poll(loads):
        l1, l2 = A.newlabel("Lw"), A.newlabel("Lg")
        A("s_mov_b32 s%d, 0", sCNT)
        A.label(l1)
        for (dst, voff, sd, soff, imm) in loads:
            A("buffer_load_dwordx4 %s, v%d, %s, s%d offen offset:%d sc1" % (vr(dst, 4), voff, sr(sd, 4), soff, imm))
        A("s_add_u32 s%d, s%d, 1", sCNT, sCNT)
        A("s_waitcnt vmcnt(0)"); A.vm = []
        d = [x[0] for x in loads]
        A("v_max3_u32 v%d, v%d, v%d, v%d", T0, d[0], d[1], d[2])
        k = 3
        while k < len(d):
            if k + 1 < len(d): A("v_max3_u32 v%d, v%d, v%d, v%d", T0, T0, d[k], d[k + 1]); k += 2
            else: A("v_max_u32 v%d, v%d, v%d", T0, T0, d[k]); k += 1
        A("v_cmp_eq_u32 vcc, -1, v%d", T0)
        A("s_cbranch_vccz %s", l2)
        A("s_cmp_lt_u32 s%d, %d", sCNT, POLL_LIMIT)
        A("s_cbranch_scc1 %s", l1)
        A.label(l2)

    A("s_cmp_ge_u32 s2, 256")
    A("s_cbranch_scc1 K_end")
    A("s_load_dwordx16 s[76:91], s[0:1], 0")
    A("s_load_dwordx8 s[92:99], s[0:1], 64")
    A("s_load_dwordx2 s[100:101], s[0:1], 96")
    if OPT["stamps"]: A("s_memrealtime s[74:75]"); A("s_memtime s[70:71]")
    A("v_lshrrev_b32 v2, 6, v0")
    A("v_and_b32 v0, 63, v0")
    A("v_readfirstlane_b32 s%d, v2", sW)
    A("s_and_b32 s%d, s2, 7", sT)
    A("s_lshl_b32 s%d, s%d, 5", sT, sT)
    A("s_lshr_b32 s%d, s2, 3", sIDX)
    A("s_add_u32 s%d, s%d, s%d", sL, sT, sIDX)
    A("s_lshr_b32 s%d, s%d, 3", sG, sL)
    A("s_and_b32 s%d, s%d, 7", sJJ, sL)
    A("v_lshlrev_b32 v%d, 4, v0", vL16)
    A("v_lshrrev_b32 v9, 4, v0")
    A("v_and_b32 v10, 15, v0")
    A("v_lshlrev_b32 v8, 10, v9")
    A("v_lshl_add_u32 v8, v10, 4, v8")
    A("s_and_b32 s%d, s%d, 1", sj, sJJ)
    A("s_lshl_b32 s%d, s%d, 16", sT2, sG)
    A("s_lshl_b32 s%d, s%d, 12", sSTG, sW)
    A("s_add_u32 s%d, s%d, s%d", sT2, sT2, sSTG)
    A("s_lshl_b32 s%d, s%d, 15", sT3, sj)
    A("s_add_u32 s%d, s%d, s%d", sT2, sT2, sT3)
    A("s_xor_b32 s%d, s%d, 0x8000", sT3, sT2)
    A("v_lshrrev_b32 v11, 2, v0")
    A("v_and_b32 v12, 3, v0")
    A("v_lshlrev_b32 v12, 4, v12")
    A("v_lshl_add_u32 v%d, v11, 10, v12", vW)
    A("s_waitcnt lgkmcnt(0)")
    srd(sX, sPTR, 2048 * KB)
    A("s_add_u32 s%d, s%d, 0x%x", sVM, sPTR + 24, WS_EPOCH)
    A("s_addc_u32 s%d, s%d, 0", sVM + 1, sPTR + 25)
    XA, XB = 16, 32
    for i in range(4):
        A.vmem("buffer_load_dwordx4 %s, v8, %s, s%d offen offset:%d" % (vr(XA + 4 * i, 4), sr(sX, 4), sT2, 256 * i), "xa")
    A("s_load_dword s%d, s[%d:%d], 0", sTAG, sVM, sVM + 1)
    A("s_cmp_lt_u32 s%d, 2", sJJ)
    A("s_cselect_b32 s%d, s%d, s%d", sWKV, sPTR + 4, sPTR + 6)
    A("s_cselect_b32 s%d, s%d, s%d", sWKV + 1, sPTR + 5, sPTR + 7)
    A("s_mov_b32 s%d, 0x%x", sWKV + 2, 512 * 32)
    A("s_mov_b32 s%d, 0x00020000", sWKV + 3)
    A("s_lshl_b32 s%d, s%d, 11", sT, sW)
    A("s_add_u32 m0, s%d, %d", sT, WKV0)
    A("s_cmp_lt_u32 s%d, 4", sJJ)
    A("s_cselect_b64 exec, -1, 0")
    for i in range(2):
        A.vmem("buffer_load_dwordx4 v%d, %s, s%d offen offset:%d lds" % (vL16, sr(sWKV, 4), sT, KB * i), "wkv")
    A("s_mov_b64 exec, -1")
    A("s_barrier")
    for i in range(4):
        A.vmem("buffer_load_dwordx4 %s, v8, %s, s%d offen offset:%d" % (vr(XB + 4 * i, 4), sr(sX, 4), sT3, 256 * i), "xb")
    srd(sWQ, sPTR + 2, 512 * KB)
    aKH, aNT = sOWN, sOWN2
    A("s_and_b32 s%d, s%d, 1", aKH, sW)
    A("s_bfe_u32 s%d, s%d, 0x10001", aNT, sW)
    A("s_lshr_b32 s%d, s%d, 2", sKH, sW)
    A("s_lshr_b32 s%d, s%d, 1", sT2, sW)
    A("s_lshl_b32 s%d, s%d, 13", sT3, sT2)
    A("s_lshl_b32 s%d, s%d, 15", sT, aKH)
    A("s_add_u32 s%d, s%d, s%d", sT3, sT3, sT)
    A("s_lshl_b32 s%d, s%d, 17", sT2, sT2)
    A("s_lshl_b32 s%d, s%d, 7", sT, sJJ)
    A("s_add_u32 s%d, s%d, s%d", sT2, sT2, sT)
    A("s_lshl_b32 s%d, s%d, 6", sT, aKH)
    A("s_add_u32 s%d, s%d, s%d", sT2, sT2, sT)
    A("s_barrier")
    for i in range(8):
        if i % 4 == 0: A("s_add_u32 m0, s%d, %d", sT3, WQ0 + KB * i)
        A("s_add_u32 s%d, s%d, %d", sT, sT2, i * 16384 - (i % 4) * KB)
        A.vmem("buffer_load_dwordx4 v%d, %s, s%d offen offset:%d lds" % (vW, sr(sWQ, 4), sT, (i % 4) * KB), "wq")
    if OPT.get("ctouch", 1):
        lb = A.newlabel("Lc")
        A("s_cmp_lg_u32 s%d, 7", sW)
        A("s_cbranch_scc1 %s", lb)
        A("s_getpc_b64 s[%d:%d]", sW3M, sW3M + 1)
        A("s_and_b32 s%d, s%d, 7", sT, sIDX)
        A("s_lshl_b32 s%d, s%d, 13", sT, sT)
        A("v_lshlrev_b32 v13, 7, v0")
        A("v_add_u32 v13, s%d, v13", sT)
        A("v_min_u32 v13, CODE_SPAN, v13")
        A("global_load_dword v62, v13, s[%d:%d]", sW3M, sW3M + 1)
        A.label(lb)
        A.label("L_codebase")
    srd(sWS, sPTR + 24, WS_END)
    srd(sWO, sPTR + 8, 512 * KB)
    srd(sW1, sPTR + 12, 512 * KB)
    srd(sW2, sPTR + 14, 512 * KB)
    srd(sW3, sPTR + 16, 512 * 3584)
    srd(sW4, sPTR + 18, 1792 * KB)
    A("s_mov_b32 s%d, s%d", sB3, sPTR + 20)
    A("s_mov_b32 s%d, s%d", sB4, sPTR + 21)
    if OPT["stamps"]:
        A("s_mov_b32 s%d, s70", sSTAMP); nstamp[0] = 1
    A("s_mul_i32 s%d, s%d, 33792", sT, sj)
    A("s_lshl_b32 s%d, s%d, 6", sT2, sW)
    A("s_add_u32 s%d, s%d, s%d", sT2, sT2, sT)
    A("s_add_u32 s%d, s%d, %d", sT2, sT2, XN)
    A("v_mul_u32_u24 v11, 528, v10")
    A("v_lshl_add_u32 v11, v9, 4, v11")
    A("v_add_u32 v12, s%d, v11", sT2)
    A("s_sub_u32 s%d, s%d, s%d", sT2, sT2, sT)
    A("s_sub_u32 s%d, s%d, s%d", sT2, sT2, sT)
    A("s_add_u32 s%d, s%d, 33792", sT2, sT2)
    A("v_add_u32 v11, s%d, v11", sT2)
    A("v_lshrrev_b32 v9, 5, v0")
    A("v_mul_u32_u24 v9, 528, v9")
    A("v_and_b32 v10, 31, v0")
    A("v_lshl_add_u32 v9, v10, 4, v9")
    A("s_mul_i32 s%d, s%d, %d", sT2, sW, 8 * 1056)
    A("s_add_u32 s%d, s%d, s%d", sT2, sT2, sT)
    A("s_add_u32 s%d, s%d, %d", sT2, sT2, XN)
    A("v_add_u32 v10, s%d, v9", sT2)
    A("s_mul_i32 s%d, s%d, 33792", sT, sKH)
    A("s_mul_i32 s%d, s%d, %d", sT2, aKH, 16 * 1056)
    A("s_add_u32 s%d, s%d, s%d", sT2, sT2, sT)
    A("s_add_u32 s%d, s%d, %d", sT2, sT2, XN)
    A("v_add_u32 v9, s%d, v9", sT2)
    tr_lane(13, 14, 32)
    A("v_add_u32 v13, s%d, v13", sSTG)
    tr_lane(vTR, 14, 64)
    A("v_bfe_u32 v14, v0, 4, 1")
    A("v_xor_b32 v15, s%d, v14", aKH)
    A("v_lshl_add_u32 v8, v15, 5, v%d", vTR)
    A("v_lshl_add_u32 v%d, v14, 5, v%d", vTR, vTR)
    A("s_lshl_b32 s%d, s%d, 15", sT, aNT)
    A("s_lshl_b32 s%d, s%d, 14", sT2, aKH)
    A("s_add_u32 s%d, s%d, s%d", sT, sT, sT2)
    A("s_add_u32 s%d, s%d, %d", sT, sT, WQ0)
    A("v_add_u32 v8, s%d, v8", sT)
    A("v_add_u32 v%d, s%d, v%d", vTR, sSTG, vTR)
    A("v_add_u32 v%d, 0x%x, v%d", vTRA, SLOT_A, vTR)
    A("v_add_u32 v%d, 0x10000, v%d", vHI, vL16)
    A("v_mov_b32 v15, 0x%x", ONES)
    def normalize(X, addr):
        s1, s2, r0, tt = 48, 49, 50, 52
        for i in range(16):
            A("v_dot2_f32_bf16 v%d, v%d, v15, %s", s1, X + i, "v%d" % s1 if i else "0")
            A("v_dot2_f32_bf16 v%d, v%d, v%d, %s", s2, X + i, X + i, "v%d" % s2 if i else "0")
        A("s_nop 2")
        for mod in ("quad_perm:[1,0,3,2]", "quad_perm:[2,3,0,1]", "row_half_mirror", "row_mirror"):
            A("v_add_f32_dpp v%d, v%d, v%d %s row_mask:0xf bank_mask:0xf", s1, s1, s1, mod)
            A("v_add_f32_dpp v%d, v%d, v%d %s row_mask:0xf bank_mask:0xf", s2, s2, s2, mod)
            A("s_nop 0")
        A("v_mul_f32 v%d, %s, v%d", s1, f32(1.0 / 512), s1)
        A("v_mul_f32 v%d, %s, v%d", s2, f32(1.0 / 512), s2)
        A("v_fma_f32 v%d, -v%d, v%d, v%d", s2, s1, s1, s2)
        A("v_max_f32 v%d, 0, v%d", s2, s2)
        A("v_add_f32 v%d, %s, v%d", s2, f32(EPS), s2)
        A("v_rsq_f32 v%d, v%d", r0, s2)
        A("s_nop 0")
        A("v_mul_f32 v%d, v%d, v%d", s1, s1, r0)
        for i in range(4):
            for d in range(4):
                A("v_lshlrev_b32 v%d, 16, v%d", tt + 2 * d, X + 4 * i + d)
                A("v_and_b32 v%d, 0xffff0000, v%d", tt + 2 * d + 1, X + 4 * i + d)
            for d in range(4):
                A("v_pk_fma_f32 %s, %s, %s, %s op_sel_hi:[1,0,0] neg_lo:[0,0,1] neg_hi:[0,0,1]", vr(tt + 2 * d, 2), vr(tt + 2 * d, 2), vr(r0, 2), vr(s1, 2))
            for d in range(4):
                A("v_cvt_pk_bf16_f32 v%d, v%d, v%d", X + 4 * i + d, tt + 2 * d, tt + 2 * d + 1)
            A.lds("ds_write_b128 v%d, %s offset:%d" % (addr, vr(X + 4 * i, 4), 8448 * i))
    A("s_waitcnt lgkmcnt(0)")
    A("s_add_u32 s%d, s%d, 0x%x", sTAG, sTAG, TAGSTEP)
    A("s_and_b32 s%d, s%d, -8", sTAG, sTAG)
    A.wait(vm="xa")
    stamp(3)
    normalize(XA, 12)
    A.wait(vm="wkv", lg=None)
    A("s_barrier")
    stamp(3)
    AF, BFA, ACC2, QACC = 64, 128, 192, 208
    A("s_cmp_lt_u32 s%d, 4", sJJ)
    A("s_cselect_b32 s%d, s%d, 8", sCNT, sW)
    A("s_cmp_ge_u32 s%d, 4", sCNT)
    A("s_cbranch_scc1 LA_nochain")
    for i in range(8):
        A("ds_read_b64_tr_b16 %s, v13 offset:%d" % (vr(AF + 4 * i, 2), 512 * i))
        A("ds_read_b64_tr_b16 %s, v13 offset:%d" % (vr(AF + 4 * i + 2, 2), 512 * i + 128))
        A("ds_read_b128 %s, v10 offset:%d" % (vr(BFA + 4 * i, 4), 1056 * i))
    A("s_lshl_b32 s%d, s%d, 11", sT, sW)
    A("s_add_u32 s%d, s%d, %d", sT, sT, EX2)
    A("v_add_u32 v14, s%d, v%d", sT, vL16)
    A("s_cmp_lt_u32 s%d, 2", sJJ)
    A("s_cbranch_scc0 LA_v")
    for i in range(8):
        A("s_waitcnt lgkmcnt(%d)", min(15, 3 * (7 - i)))
        A.mfma(ACC2, AF + 4 * i, BFA + 4 * i, ACC2 if i else None)
    A("s_nop 11")
    A("s_branch LA_part")
    A.label("LA_v")
    for i in range(8):
        A("s_waitcnt lgkmcnt(%d)", min(15, 3 * (7 - i)))
        A.mfma(ACC2, BFA + 4 * i, AF + 4 * i, ACC2 if i else None)
    A("v_and_b32 v60, 16, v0")
    A("v_cmp_eq_u32 vcc, 0, v60")
    A("s_nop 9")
    for i in range(8): A("v_cndmask_b32 v%d, v%d, v%d, vcc", ACC2 + i, ACC2 + i, ACC2 + 8 + i)
    A.label("LA_part")
    A("ds_write_b128 v14, %s" % vr(ACC2, 4))
    A("ds_write_b128 v14, %s offset:1024" % vr(ACC2 + 4, 4))
    A("s_waitcnt lgkmcnt(0)")
    A("s_barrier")
    sv = (list(A.vm), list(A.lg))
    A.wait(vm="xb")
    normalize(XB, 11)
    A("s_branch LA_join")
    A.label("LA_nochain")
    A.vm, A.lg = list(sv[0]), list(sv[1])
    A.wait(vm="xb")
    normalize(XB, 11)
    A("s_barrier")
    A("s_cmp_lg_u32 s%d, 4", sCNT)
    A("s_cbranch_scc1 LA_join")
    A("v_add_u32 v14, 0x%x, v%d", EX2, vL16)
    for p in range(4):
        for i in range(2):
            A("ds_read_b128 %s, v14 offset:%d" % (vr(AF + 8 * p + 4 * i, 4), 2048 * p + KB * i))
    A("s_lshl_b32 s%d, s%d, 1", sT, sG)
    A("s_add_u32 s%d, s%d, s%d", sT, sT, sj)
    A("s_lshl_b32 s%d, s%d, 1", sT, sT)
    A("s_lshr_b32 s%d, s%d, 1", sT2, sJJ)
    A("s_add_u32 s%d, s%d, s%d", sT, sT, sT2)
    A("s_lshl_b32 s%d, s%d, 10", sT2, sT)
    A("s_add_u32 s%d, s%d, 0x%x", sT2, sT2, WS_KV)
    A("s_waitcnt lgkmcnt(0)")
    for i in range(0, 8, 2):
        A("v_pk_add_f32 %s, %s, %s", vr(AF + i, 2), vr(AF + i, 2), vr(AF + 8 + i, 2))
        A("v_pk_add_f32 %s, %s, %s", vr(AF + 16 + i, 2), vr(AF + 16 + i, 2), vr(AF + 24 + i, 2))
    for i in range(0, 8, 2): A("v_pk_add_f32 %s, %s, %s", vr(AF + i, 2), vr(AF + i, 2), vr(AF + 16 + i, 2))
    for i in range(4): A("v_cvt_pk_bf16_f32 v%d, v%d, v%d", AF + 8 + i, AF + 2 * i, AF + 2 * i + 1)
    A("buffer_store_dwordx4 %s, v%d, %s, s%d offen sc1" % (vr(AF + 8, 4), vL16, sr(sWS, 4), sT2))
    A("v_mov_b32 v60, s%d", sTAG)
    A("s_lshl_b32 s%d, s%d, 7", sT, sG)
    A("s_lshl_b32 s%d, s%d, 2", sT2, sJJ)
    A("s_add_u32 s%d, s%d, s%d", sT, sT, sT2)
    A("s_add_u32 s%d, s%d, 0x%x", sT, sT, WS_KVF)
    A("s_waitcnt vmcnt(0)")
    A("s_mov_b64 exec, 1")
    A("buffer_store_dword v60, v%d, %s, s%d offen sc1" % (vL16, sr(sWS, 4), sT))
    A("s_mov_b64 exec, -1")
    A("s_waitcnt lgkmcnt(0)")
    A("s_branch LA_join2")
    A.label("LA_join")
    stamp(3)
    A("s_waitcnt vmcnt(0) lgkmcnt(0)")
    A.label("LA_join2")
    A.vm = []; A.lg = []
    A("s_barrier")
    stamp(3)
    def rd(i):
        A.lds("ds_read_b64_tr_b16 %s, v8 offset:%d" % (vr(AF + 4 * i, 2), KB * i), i)
        A.lds("ds_read_b64_tr_b16 %s, v8 offset:%d" % (vr(AF + 4 * i + 2, 2), KB * i + 256), i)
        A.lds("ds_read_b128 %s, v9 offset:%d" % (vr(BFA + 4 * i, 4), 1056 * i), i)
    def setup_rest():
        A("s_add_u32 s%d, s%d, 0x%x", sHH, sWS, WS_HH)
        A("s_addc_u32 s%d, s%d, 0", sHH + 1, sWS + 1)
        A("s_mov_b32 s%d, 0x%x", sHH + 2, 2048 * KB)
        A("s_mov_b32 s%d, 0x00020000", sHH + 3)
        yield
        srd(sOUT, sB3, 2048 * KB)
        yield
        A("s_lshr_b32 s%d, s%d, 2", sg, sL)
        A("s_and_b32 s%d, s%d, 3", sj, sL)
        A("s_and_b32 s%d, s%d, 3", st, sW)
        yield
        A("s_lshl_b32 s%d, s%d, 18", sB512, sKH)
        A("s_lshl_b32 s%d, s%d, 8", sT, sj)
        A("s_add_u32 s%d, s%d, s%d", sB512, sB512, sT)
        A("s_lshl_b32 s%d, s%d, 6", sT, st)
        A("s_add_u32 s%d, s%d, s%d", sB512, sB512, sT)
        yield
        A("s_mul_i32 s%d, s%d, 448", sB3, sJJ)
        A("s_min_u32 s%d, s%d, 6", sT, sW)
        A("s_lshl_b32 s%d, s%d, 6", sT, sT)
        A("s_add_u32 s%d, s%d, s%d", sB3, sB3, sT)
        yield
        A("s_mul_i32 s%d, s%d, %d", sB4, sJJ, 224 * KB)
        A("s_lshl_b32 s%d, s%d, 7", sT, sW)
        A("s_add_u32 s%d, s%d, s%d", sB4, sB4, sT)
        yield
        A("s_lshl_b32 s%d, s%d, 1", sT, sG)
        A("s_add_u32 s%d, s%d, s%d", sT, sT, sKH)
        A("s_lshl_b32 s%d, s%d, 5", sT, sT)
        A("s_lshl_b32 s%d, s%d, 2", sT2, sJJ)
        yield
        A("s_add_u32 s%d, s%d, s%d", sT, sT, sT2)
        A("s_add_u32 s%d, s%d, s%d", sT, sT, st)
        A("s_lshl_b32 s%d, s%d, 10", sT, sT)
        A("s_add_u32 s%d, s%d, 0x%x", sOFR, sT, WS_O)
        yield
        A("s_lshl_b32 s%d, s%d, 19", sT, sG)
        A("s_lshl_b32 s%d, s%d, 15", sT2, sW)
        A("s_add_u32 s%d, s%d, s%d", sT, sT, sT2)
        A("s_lshl_b32 s%d, s%d, 10", sT2, sJJ)
        yield
        A("s_add_u32 s%d, s%d, s%d", sT, sT, sT2)
        A("s_add_u32 s%d, s%d, 0x%x", sPRT, sT, WS_PART)
        A("s_mov_b32 s%d, 0xffff0000", sVM)
        A("s_mov_b32 s%d, 0xffff0000", sVM + 1)
        yield
        A("s_mov_b32 s%d, %s", sGB, f32(GB))
        A("s_mov_b32 s%d, %s", sGB + 1, f32(GB))
        A("s_getreg_b32 s%d, hwreg(HW_REG_XCC_ID)", sNIB)
        A("s_and_b32 s%d, s%d, 7", sNIB, sNIB)
        A("s_or_b32 s%d, s%d, s%d", sNIB, sNIB, sTAG)
        yield
        A("s_cmp_lg_u32 s%d, 7", sW)
        A("s_cselect_b64 %s, -1, 0", sr(sW3M, 2))
        A("v_lshrrev_b32 v%d, 2, v0", vW3)
        A("v_mul_u32_u24 v%d, 3584, v%d", vW3, vW3)
        A("v_and_b32 v14, 3, v0")
        A("v_lshl_add_u32 v%d, v14, 4, v%d", vW3, vW3)
        yield
        A("v_lshlrev_b32 v%d, 7, v0", vTCH)
        A("v_and_b32 v14, 32, v0")
        A("v_lshl_or_b32 v%d, v14, 25, v%d", vTCH, vTCH)
        yield
        A("s_lshl_b32 s%d, s%d, 11", sT, sW)
        A("s_add_u32 s%d, s%d, %d", sT, sT, EX)
        A("v_add_u32 v12, s%d, v%d", sT, vL16)
        A("v_xor_b32 v13, 0x800, v12")
        yield
    su = setup_rest()
    D = 4
    for i in range(D): rd(i)
    for i in range(16):
        if i + D < 16: rd(i + D)
        A.wait(lg=i)
        A.mfma(QACC, AF + 4 * i, BFA + 4 * i, QACC if i else None)
        next(su, None)
    run(su)
    A("s_lshl_b32 s%d, s%d, 13", sT, sL)
    A("s_lshl_b32 s%d, s%d, 10", sT3, sW)
    A("s_add_u32 s%d, s%d, s%d", sOWN, sT, sT3)
    A("s_lshl_b32 s%d, s%d, 11", sT2, st)
    A("s_add_u32 s%d, s%d, s%d", sOWN2, sT, sT2)
    A("s_barrier")
    stamp(3)
    A("s_nop 4")
    A.lds("ds_write_b128 v12, %s" % vr(QACC + 8, 4))
    A.lds("ds_write_b128 v12, %s offset:1024" % vr(QACC + 12, 4))
    A("s_cmp_lg_u32 s%d, 0", sW)
    A("s_cbranch_scc1 LA_kvok")
    A("v_and_b32 v14, 31, v0")
    A("v_lshlrev_b32 v14, 7, v14")
    A("s_mov_b32 s%d, 0", sCNT)
    A("s_mov_b32 s%d, 0x%x", sT, WS_KVF)
    A.label("LA_kvw")
    A("buffer_load_dwordx4 v[16:19], v14, %s, s%d offen sc1" % (sr(sWS, 4), sT))
    A("s_add_u32 s%d, s%d, 1", sCNT, sCNT)
    A("s_waitcnt vmcnt(0)")
    for i in range(4): A("v_xor_b32 v%d, s%d, v%d", 16 + i, sTAG, 16 + i)
    A("v_or3_b32 v16, v16, v17, v18")
    A("v_or_b32 v16, v16, v19")
    A("v_cmp_ne_u32 vcc, 0, v16")
    A("s_cbranch_vccz LA_kvok")
    A("s_cmp_lt_u32 s%d, %d", sCNT, POLL_LIMIT)
    A("s_cbranch_scc1 LA_kvw")
    A.label("LA_kvok")
    A.wait(lg=None)
    A("s_barrier")
    stamp(3)
    for i in range(16):
        A("s_add_u32 m0, s%d, %d", sT3, 8192 * i)
        A("s_add_u32 s%d, s%d, 0x%x", sT, sT3, WS_KV + 8192 * i)
        A.vmem("buffer_load_dwordx4 v%d, %s, s%d offen sc1 lds" % (vL16, sr(sWS, 4), sT), "kv%d" % i)
        if i == 1:
            A.lds("ds_read_b128 %s, v13" % vr(8, 4))
            A.lds("ds_read_b128 %s, v13 offset:1024" % vr(12 + 4, 4))
    A("s_mov_b32 s%d, %s", sT2, f32(QSCALE))
    A.wait(lg=None)
    for i in range(4): A("v_add_f32 v%d, v%d, v%d", QACC + i, QACC + i, 8 + i)
    for i in range(4): A("v_add_f32 v%d, v%d, v%d", QACC + 4 + i, QACC + 4 + i, 16 + i)
    for i in range(8): A("v_mul_f32 v%d, s%d, v%d", QACC + i, sT2, QACC + i)
    for i in range(4): A("v_cvt_pk_bf16_f32 v%d, v%d, v%d", Q + i, QACC + 2 * i, QACC + 2 * i + 1)
    if OPT["dbgq"]:
        A.vmem("buffer_store_dwordx4 %s, v%d, %s, s%d offen" % (vr(Q, 4), vL16, sr(sWS, 4), sOWN))
    for i in range(4): A("v_mov_b32 v%d, -1", SENT + i)
    for p in range(2):
        for i in range(8): A("v_mov_b32 v%d, 0x%x", VF[p] + i, ONES)

    NT = 64; TB = OPT.get("tb", 6); TF = OPT.get("tf", 36)
    def kvaddr(T): return (vL16, T * 2048) if T < 32 else (vHI, (T - 32) * 2048)
    def rdK(T, dst):
        b, o = kvaddr(T); A.lds("ds_read_b128 %s, v%d offset:%d" % (vr(dst, 4), b, o), "K%d" % T)
    def rdV(T, dst):
        b, o = kvaddr(T)
        A("s_mov_b64 exec, %s", sr(sVM, 2))
        A.lds("ds_read_b128 %s, v%d offset:%d" % (vr(dst, 4), b, o + 1024), "V%d" % T)
        A.lds("ds_read_b128 %s, v%d offset:%d" % (vr(dst + 4, 4), b, o + 768), "V%d" % T)
        A("s_mov_b64 exec, -1")
    def rowmajor_off(dst, tmp, frag_sreg, shift):
        A("v_and_b32 v%d, 31, v0", dst)
        A("v_lshlrev_b32 v%d, 10, v%d", dst, dst)
        A("v_lshrrev_b32 v%d, 5, v0", tmp)
        A("v_lshl_add_u32 v%d, v%d, 4, v%d", dst, tmp, dst)
        A("s_lshl_b32 s%d, s%d, 15", sT2, sg)
        A("s_lshl_b32 s%d, s%d, 8", sT3, sj)
        A("s_add_u32 s%d, s%d, s%d", sT2, sT2, sT3)
        A("s_lshl_b32 s%d, s%d, %d", sT3, frag_sreg, shift)
        A("s_add_u32 s%d, s%d, s%d", sT2, sT2, sT3)
    jobs = {}
    def job(t, f): jobs.setdefault(t, []).append(f)
    def fill(soff_reg, const):
        A("s_add_u32 s%d, s%d, 0x%x", sT, soff_reg, const)
        A.vmem("buffer_store_dwordx4 %s, v%d, %s, s%d offen sc1" % (vr(SENT, 4), vL16, sr(sWS, 4), sT), "fill")
    def touch(sd, per_cu, per_wave, extra):
        A("s_mul_i32 s%d, s%d, %d", sT, sIDX, per_cu)
        A("s_mul_i32 s%d, s%d, %d", sT2, sW, per_wave)
        A("s_add_u32 s%d, s%d, s%d", sT, sT, sT2)
        A.vmem("buffer_load_dword v%d, v%d, %s, s%d offen offset:%d" % (T0 + 3, vTCH, sr(sd, 4), sT, extra), "touch")
    for i, sd in enumerate((sWO, sW1, sW2)): job(i, lambda sd=sd: touch(sd, 16384, 2048, 0))
    def fill_stats():
        A("s_lshl_b32 s%d, s%d, 10", sSTP, sL)
        A("s_and_b32 s%d, s%d, 1", sT2, sW)
        A("s_lshl_b32 s%d, s%d, 18", sT2, sT2)
        A("s_add_u32 s%d, s%d, s%d", sT2, sT2, sSTP)
        fill(sT2, WS_SH)
    job(3, fill_stats)
    fl = [(sOFR, 0), (sOWN, WS_H), (sOWN, WS_HH), (sOWN, WS_X1)] + [(sPRT, mt * 32 * 8192 + q * 8192) for mt in range(2) for q in range(4)]
    rounds = [(("sq", sWO, r), WO + 16 * r) for r in range(4)] + [(("sq", sW1, r), W1 + 16 * r) for r in range(4)] + \
             [(("sq", sW2, r), W2A + 16 * r) for r in range(2)] + [(("sq", sW2, 2), None)]
    t0 = TB + 1
    tch = [(sW3, 0), (sW3, 3072), (sW4, 0), (sW4, 3072)]
    for i, (kind, dst) in enumerate(rounds):
        def d(kind=kind, i=i):
            A.wait(lg="rt%d" % (i - 1))
            round_dma(kind, SLOT_A, "rd%d" % i)
        job(t0 + 5 * i, d)
        if i < 4:
            for u in range(3): job(t0 + 5 * i + 1 + u, lambda a=fl[3 * i + u]: fill(*a))
        if i in (3, 4, 6, 7):
            sd, ex = tch[(3, 4, 6, 7).index(i)]
            job(t0 + 5 * i, lambda sd=sd, ex=ex: touch(sd, 57344, 7168, ex))
        if dst is not None:
            job(t0 + 5 * i + 4, lambda i=i, dst=dst: round_tr(SLOT_A, dst, "rd%d" % i, "rt%d" % i))
    job(TF + 3, lambda: round_dma(("sq", sW2, 3), SLOT_B, "w2r3"))
    job(TF + 13, lambda: round_dma(("w3", 0), SLOT_C, "w3r0"))
    def xres():
        rowmajor_off(T0, T0 + 1, st, 6)
        A.vmem("buffer_load_dwordx4 %s, v%d, %s, s%d offen" % (vr(XRES, 4), T0, sr(sX, 4), sT2), "xres")
        A.vmem("buffer_load_dwordx4 %s, v%d, %s, s%d offen offset:32" % (vr(XRES + 4, 4), T0, sr(sX, 4), sT2), "xres")
    job(TF + 8, xres)
    def stat_addr():
        A("s_and_b32 s%d, s%d, 1", sT, sg)
        A("s_lshl_b32 s%d, s%d, 1", sT, sT)
        A("s_add_u32 s%d, s%d, s%d", sT, sT, sG)
        A("s_sub_u32 s%d, s%d, 1", sT, sT)
        A("s_cmp_lt_u32 s%d, 32", sT)
        A("s_cselect_b32 s%d, s%d, s%d", sT, sT, sG)
        A("s_lshl_b32 s%d, s%d, 7", sT, sT)
        A("s_add_u32 s%d, s%d, 0x%x", sT, sT, WS_STAT)
        A("s_lshl_b32 s%d, s%d, 7", sT2, sG)
        A("s_add_u32 s%d, s%d, 0x%x", sT2, sT2, WS_STAT)
        A("v_and_b32 v%d, 7, v0", T0 + 1)
        A("v_lshlrev_b32 v%d, 2, v%d", T0 + 1, T0 + 1)
    def stat_load(track):
        f = A.vmem if track else A
        f("buffer_load_dword v%d, v%d, %s, s%d offen sc1" % (T0 + 2, T0 + 1, sr(sWS, 4), sT2))
        f("buffer_load_dword v%d, v%d, %s, s%d offen sc1" % (T0 + 3, T0 + 1, sr(sWS, 4), sT))
    job(60, lambda: (stat_addr(), stat_load(True)))
    prio = {0: 3, TB - 3: 2, TB - 2: 1, TB - 1: 0, TB: 3, TF - 10: 2, TF - 4: 1, TF - 1: 0, TF: 3, 54: 2, 60: 1, 63: 0}
    npc = ((TB + 2) * 2 - 1) // 8
    A.wait(vm="kv%d" % npc)
    A("s_barrier")
    rdK(0, KF[0]); rdK(1, KF[1])
    A.wait(lg="K0")
    A.mfma(S[0], KF[0], Q)
    A("s_nop 11")
    stamp(); stamp(3)
    for t in range(NT):
        p = t & 1; q = 1 - p
        if t == TB:
            A.wait(vm="kv15")
            A("s_barrier")
        if t == TF:
            A.wait(vm="fill")
            A("s_barrier")
            A("v_mov_b32 v%d, s%d", T0, sNIB)
            A("s_lshl_b32 s%d, s%d, 7", sT, sG)
            A("s_lshl_b32 s%d, s%d, 2", sT2, sJJ)
            A("s_add_u32 s%d, s%d, s%d", sT, sT, sT2)
            A("s_add_u32 s%d, s%d, 0x%x", sT, sT, WS_STAT)
            A("s_cmp_lg_u32 s%d, 0", sW)
            A("s_cselect_b64 exec, 0, 1")
            A.vmem("buffer_store_dword v%d, v%d, %s, s%d offen sc1" % (T0, vL16, sr(sWS, 4), sT), "sig")
            A("s_mov_b64 exec, -1")
        if t in prio: A("s_setprio %d", prio[t])
        if t in (0, 6, 12, 18, 24, 30, 36, 42, 48, 56): stamp(5)
        valu = []
        for k in range(8):
            valu.append("v_exp_f32 v%d, v%d" % (S[p] + 2 * k, S[p] + 2 * k))
            valu.append("v_exp_f32 v%d, v%d" % (S[p] + 2 * k + 1, S[p] + 2 * k + 1))
            if k >= 1: valu.append("v_cvt_pk_bf16_f32 v%d, v%d, v%d" % (S[p] + k - 1, S[p] + 2 * k - 2, S[p] + 2 * k - 1))
        valu.append("v_cvt_pk_bf16_f32 v%d, v%d, v%d" % (S[p] + 7, S[p] + 14, S[p] + 15))
        for i, x in enumerate(valu):
            if i == 2:
                A.wait(lg=["V%d" % (t - 1), "K%d" % (t + 1)])
                if t >= 1: A.mfma(ACC, VF[q], S[q], ACC if t > 1 else None)
            if i == 5 and t + 2 < NT: rdK(t + 2, KF[p])
            if i == 7 and t >= 1: A.mfma(ACC, VF[q] + 4, S[q] + 4, ACC)
            if i == 11 and t + 1 < NT: A.mfma(S[q], KF[q], Q)
            if i == 15: rdV(t, VF[p])
            if i == 18:
                for jb in jobs.get(t, []): jb()
            A(x)
    A.wait(lg="V63")
    A("s_nop 0")
    A.mfma(ACC, VF[1], S[1], ACC)
    A.mfma(ACC, VF[1] + 4, S[1] + 4, ACC)
    A("s_mov_b32 s%d, 0", sCNT)
    A("s_branch L_stat2")
    A.label("L_stat")
    stat_addr(); stat_load(False)
    A.label("L_stat2")
    A("s_add_u32 s%d, s%d, 1", sCNT, sCNT)
    A("s_waitcnt vmcnt(0)"); A.vm = []
    A("v_xor_b32 v%d, s%d, v%d", T0 + 2, sNIB, T0 + 2)
    A("v_xor_b32 v%d, s%d, v%d", T0 + 3, sNIB, T0 + 3)
    A("v_or_b32 v%d, v%d, v%d", T0 + 3, T0 + 2, T0 + 3)
    A("v_cmp_lt_u32 vcc, 7, v%d", T0 + 3)
    A("s_cbranch_vccz L_stat_ok")
    A("s_cmp_lt_u32 s%d, %d", sCNT, POLL_LIMIT)
    A("s_cbranch_scc1 L_stat")
    A.label("L_stat_ok")
    A("v_cmp_ne_u32 vcc, 0, v%d", T0 + 2)
    A("s_cmp_eq_u64 vcc, 0")
    A("s_cselect_b32 s%d, 1, 0", sLOCS)
    A("v_cmp_ne_u32 vcc, 0, v%d", T0 + 3)
    A("s_cmp_eq_u64 vcc, 0")
    A("s_cselect_b32 s%d, 1, 0", sLOCN)
    A("s_mov_b32 s%d, 0x%08x", sT, (127 - 64) << 23)
    A("s_mov_b32 s%d, 0x%08x", sT2, (127 + 64) << 23)
    A("v_cmp_nge_f32 vcc, v%d, s%d", ACC, sT)
    A("s_cbranch_vccnz L_slow")
    A("v_cmp_nle_f32 vcc, v%d, s%d", ACC, sT2)
    A("s_cbranch_vccnz L_slow")
    A.label("L_attn_done")
    A("v_rcp_f32 v%d, v%d", T0, ACC)
    A("s_nop 0")
    for i in range(8): A("v_mul_f32 v%d, v%d, v%d", ACC + 8 + i, ACC + 8 + i, T0)
    for i in range(4): A("v_cvt_pk_bf16_f32 v%d, v%d, v%d", Q + i, ACC + 8 + 2 * i, ACC + 9 + 2 * i)
    A("v_min_u32 v%d, -2, v%d", Q, Q)
    publish([(Q, sWS, sOFR, 0)], sLOCS)
    stamp(); stamp(5)
    A("s_barrier")

    ACC0, POLL, BF, HP = 8, 24, 56, 72
    MU, R1, CSA = 80, 81, 83
    KA = 244
    vONE = 7
    A("v_mov_b32 v%d, 0x%x", vONE, ONES)
    def colsum(wregs, first):
        n = 0
        for w in wregs:
            for i in range(4):
                A("v_dot2_f32_bf16 v%d, v%d, v%d, %s", CSA, w + i, vONE, "0" if (first and n == 0) else "v%d" % CSA)
                n += 1
    def stats_out(x, const):
        s1, s2 = T0 + 2, T0 + 3
        A("v_mul_f32 v%d, v%d, v%d", s2, x, x)
        A("v_add_f32 v%d, v%d, v%d", s1, x, x + 1)
        for i in range(1, 16):
            A("v_fmac_f32 v%d, v%d, v%d", s2, x + i, x + i)
            if i >= 2: A("v_add_f32 v%d, v%d, v%d", s1, s1, x + i)
        A("s_lshl_b32 s%d, s%d, 2", sT, st)
        A("s_add_u32 s%d, s%d, s%d", sT, sT, sSTP)
        A("v_permlane32_swap_b32 v%d, v%d", s1, s2)
        A("s_add_u32 s%d, s%d, 0x%x", sT, sT, const)
        A("v_add_f32 v%d, v%d, v%d", s1, s1, s2)
        A("v_min_u32 v%d, -2, v%d", s1, s1)
        base = "buffer_store_dword v%d, v%d, %s, s%d offen" % (s1, vL16, sr(sWS, 4), sT)
        if OPT["local"]:
            l1, l2 = A.newlabel("Lp"), A.newlabel("Lq")
            A("s_cmp_eq_u32 s%d, 1", sLOCS)
            A("s_cbranch_scc1 %s", l1)
            A(base + " sc1")
            A("s_branch %s", l2)
            A.label(l1)
            A.vmem(base, "pub")
            A.label(l2)
        else: A.vmem(base + " sc1", "pub")
    def stats_issue(tmps, soffs, track=True):
        for tmp, so in zip(tmps, soffs):
            for i in range(4):
                x = "buffer_load_dwordx4 %s, v%d, %s, s%d offen offset:%d sc1" % (vr(tmp + 4 * i, 4), vL16, sr(sWS, 4), so, KB * i)
                if track: A.vmem(x, "sti")
                else: A(x)
    def stats_in(tmps, soffs, issued=False):
        l1, l2, l3 = A.newlabel("Lw"), A.newlabel("Lg"), A.newlabel("Lf")
        A("s_mov_b32 s%d, 0", sCNT)
        if issued:
            A.wait(vm="sti")
            A("s_branch %s", l3)
        A.label(l1)
        stats_issue(tmps, soffs, False)
        A("s_add_u32 s%d, s%d, 1", sCNT, sCNT)
        A("s_waitcnt vmcnt(0)")
        if not issued: A.vm = []
        A.label(l3)
        d = [tmp + i for tmp in tmps for i in range(16)]
        A("v_max_u32 v%d, v%d, v%d", T0, d[0], d[1])
        for k in range(2, len(d), 2): A("v_max3_u32 v%d, v%d, v%d, v%d", T0, T0, d[k], d[k + 1])
        A("v_cmp_eq_u32 vcc, -1, v%d", T0)
        A("s_cbranch_vccz %s", l2)
        A("s_cmp_lt_u32 s%d, %d", sCNT, POLL_LIMIT)
        A("s_cbranch_scc1 %s", l1)
        A.label(l2)
    def stats_fin(tmp, ka, twice):
        for n in (8, 4, 2, 1):
            for i in range(n): A("v_add_f32 v%d, v%d, v%d", tmp + i, tmp + i, tmp + n + i)
            yield
        A("v_mul_f32 v%d, %s, v%d", tmp, f32(1.0 / 512), tmp)
        A("v_mov_b32 v%d, v%d", tmp + 1, tmp)
        A("s_nop 1")
        A("v_permlane32_swap_b32 v%d, v%d", tmp, tmp + 1)
        A("v_mov_b32 v%d, v%d", ka + 3, tmp)
        A("v_fma_f32 v%d, -v%d, v%d, v%d", tmp + 1, tmp, tmp, tmp + 1)
        yield
        A("v_max_f32 v%d, 0, v%d", tmp + 1, tmp + 1)
        A("v_add_f32 v%d, %s, v%d", tmp + 2, f32(EPS), tmp + 1)
        A("v_rsq_f32 v%d, v%d", tmp + 2, tmp + 2)
        A("s_nop 0")
        if twice:
            A("v_mov_b32 v%d, v%d", MU, tmp)
            A("v_mov_b32 v%d, v%d", R1, tmp + 2)
            A("v_mul_f32 v%d, v%d, v%d", tmp + 1, tmp + 1, tmp + 2)
            A("v_mul_f32 v%d, v%d, v%d", tmp + 1, tmp + 1, tmp + 2)
            A("v_add_f32 v%d, %s, v%d", tmp + 1, f32(EPS), tmp + 1)
            A("v_rsq_f32 v%d, v%d", tmp + 1, tmp + 1)
            A("s_nop 0")
            A("v_mul_f32 v%d, v%d, v%d", tmp + 2, tmp + 2, tmp + 1)
        yield
        A("v_rcp_f32 v%d, v%d", ka + 2, tmp + 2)
        A("v_mul_f32 v%d, %s, v%d", ka, f32(GA), tmp + 2)
        A("v_mul_f32 v%d, v%d, v%d", tmp + 1, tmp + 2, tmp + 2)
        A("v_mul_f32 v%d, v%d, v%d", tmp + 1, tmp + 1, tmp + 2)
        A("v_mul_f32 v%d, %s, v%d", ka + 1, f32(GB), tmp + 1)
        yield
    def cs_table(dst):
        A("v_mov_b32 v%d, v%d", T0 + 2, CSA)
        A("s_add_u32 s%d, s%d, %d", sT, sSTG, SLOT_A)
        A("s_nop 0")
        A("v_permlane32_swap_b32 v%d, v%d", CSA, T0 + 2)
        A("v_lshlrev_b32 v%d, 2, v0", T0 + 1)
        A("v_add_f32 v%d, v%d, v%d", CSA, CSA, T0 + 2)
        A("v_add_u32 v%d, s%d, v%d", T0 + 1, sT, T0 + 1)
        A.lds("ds_write_b32 v%d, v%d" % (T0 + 1, CSA), "cw")
        A("v_lshrrev_b32 v%d, 5, v0", T0 + 1)
        A("v_lshlrev_b32 v%d, 4, v%d", T0 + 1, T0 + 1)
        A("v_add_u32 v%d, s%d, v%d", T0 + 1, sT, T0 + 1)
        A.wait(lg="cw")
        for a in range(4): A.lds("ds_read_b128 %s, v%d offset:%d" % (vr(dst + 4 * a, 4), T0 + 1, 32 * a), "cs")
        A.wait(lg="cs")
    def gelu_u(u, n, tmp, ka, pk):
        if pk:
            for i in range(0, n, 2): A("v_pk_mul_f32 %s, %s, %s", vr(tmp + i, 2), vr(u + i, 2), vr(u + i, 2))
            for i in range(0, n, 2): A("v_pk_fma_f32 %s, %s, %s, %s op_sel:[0,1,0] op_sel_hi:[1,1,0]", vr(tmp + i, 2), vr(tmp + i, 2), vr(ka, 2), vr(ka, 2))
            for i in range(0, n, 2): A("v_pk_mul_f32 %s, %s, %s", vr(tmp + i, 2), vr(tmp + i, 2), vr(u + i, 2))
            for i in range(n): A("v_exp_f32 v%d, v%d", tmp + i, tmp + i)
            for i in range(0, n, 2): A("v_pk_fma_f32 %s, %s, %s, %s op_sel_hi:[1,0,0]", vr(tmp + i, 2), vr(tmp + i, 2), vr(ka + 2, 2), vr(ka + 2, 2))
            for i in range(n): A("v_rcp_f32 v%d, v%d", tmp + i, tmp + i)
            for i in range(0, n, 2): A("v_pk_mul_f32 %s, %s, %s", vr(u + i, 2), vr(u + i, 2), vr(tmp + i, 2))
            yield
            return
        seq = []
        for i in range(n): seq.append((4, "v_mul_f32 v%d, v%d, v%d" % (tmp + i, u + i, u + i)))
        for i in range(n): seq.append((4, "v_fma_f32 v%d, v%d, v%d, v%d" % (tmp + i, tmp + i, ka + 1, ka)))
        for i in range(n): seq.append((4, "v_mul_f32 v%d, v%d, v%d" % (tmp + i, tmp + i, u + i)))
        for i in range(n): seq.append((8, "v_exp_f32 v%d, v%d" % (tmp + i, tmp + i)))
        for i in range(n): seq.append((4, "v_fma_f32 v%d, v%d, v%d, v%d" % (tmp + i, tmp + i, ka + 2, ka + 2)))
        for i in range(n): seq.append((8, "v_rcp_f32 v%d, v%d" % (tmp + i, tmp + i)))
        for i in range(n): seq.append((4, "v_mul_f32 v%d, v%d, v%d" % (u + i, u + i, tmp + i)))
        c = 0
        for cost, ins in seq:
            A(ins); c += cost
            if c >= 24: c = 0; yield
        yield
    def pack8(dst, src, san=True):
        for i in range(4): A("v_cvt_pk_bf16_f32 v%d, v%d, v%d", dst + i, src + 2 * i, src + 2 * i + 1)
        if san: A("v_min_u32 v%d, -2, v%d", dst, dst)
    def unpack(dst, src, nd):
        for i in range(nd):
            A("v_lshlrev_b32 v%d, 16, v%d", dst + 2 * i, src + i)
            A("v_and_b32 v%d, 0xffff0000, v%d", dst + 2 * i + 1, src + i)
    wC = [WO + 4 * k for k in range(16)]
    wD = [W1 + 4 * k for k in range(16)]
    wE = [W2A + 4 * k for k in range(8)] + [W2B + 4 * k for k in range(8)]
    def blocks(rs): return [W3R[r] + 4 * k for r in rs for k in range(4)]
    def trs(dsts, tagvm):
        for slot, d in zip((SLOT_A, SLOT_B, SLOT_C), dsts): round_tr(slot, d, tagvm, "tr3")
    def dmas(kinds):
        for slot, kd_ in zip((SLOT_A, SLOT_B, SLOT_C), kinds): round_dma(kd_, slot, "w3n")
    def shifted_off(dst):
        A("s_lshr_b32 s%d, s%d, 1", sT, st)
        A("s_add_u32 s%d, s%d, 1", sT, sT)
        A("s_sub_u32 s%d, 0, s%d", sT2, sT)
        A("s_bitcmp1_b32 s%d, 0", st)
        A("s_cselect_b32 s%d, s%d, s%d", sT, sT, sT2)
        A("s_lshl_b32 s%d, s%d, 5", sT2, sg)
        A("s_add_u32 s%d, s%d, s%d", sT, sT, sT2)
        A("v_and_b32 v%d, 31, v0", dst)
        A("v_add_u32 v%d, s%d, v%d", dst, sT, dst)
        A("v_ashrrev_i32 v%d, 5, v%d", T0 + 2, dst)
        A("v_lshlrev_b32 v%d, 15, v%d", T0 + 2, T0 + 2)
        A("v_and_b32 v%d, 31, v%d", dst, dst)
        A("v_lshl_add_u32 v%d, v%d, 4, v%d", dst, dst, T0 + 2)
        A("v_and_b32 v%d, 32, v0", T0 + 2)
        A("v_lshl_add_u32 v%d, v%d, 4, v%d", dst, T0 + 2, dst)
        A("v_min_u32 v%d, 0x7fff0000, v%d", dst, dst)
    def late(gen, skip):
        for _ in range(skip): yield
        for _ in gen: yield

    w3regs = blocks(range(8))
    ACC1 = 24; GT = HP
    W4R = [40, 100, W3R[0], W3R[1], W3R[2], W3R[3], W3R[4]]
    GACC = {(0, 0): ACC0, (0, 1): ACC1, (1, 0): W3R[5], (1, 1): W3R[6]}
    def f_epi(acc, ka, mt, pk=False):
        for i in range(16):
            A("v_fma_f32 v%d, -v%d, v%d, v%d", acc + i, ka + 3, CS + i, acc + i)
            if i % 6 == 5: yield
        for hf in range(2):
            for _ in gelu_u(acc + 8 * hf, 8, GT, ka, pk): yield
            pack8(acc + 8 * hf, acc + 8 * hf, False)
        A("s_lshl_b32 s%d, s%d, 11", sT, sW)
        A("v_add_u32 v%d, s%d, v%d", T0, sT, vHI)
        A("s_mov_b64 exec, %s", sr(sW3M, 2))
        A.lds("ds_write_b128 v%d, %s offset:%d" % (T0, vr(acc, 4), 32 * KB + mt * 14 * KB))
        A.lds("ds_write_b128 v%d, %s offset:%d" % (T0, vr(acc + 8, 4), 32 * KB + mt * 14 * KB + KB))
        A("s_mov_b64 exec, -1")
        yield
    def f_pass(acc, base, off, side, hooks):
        def rd(k): A.lds("ds_read_b128 %s, v%d offset:%d" % (vr(BF + 4 * (k % 4), 4), base, off + KB * k), "b%d" % k)
        for k in range(3): rd(k)
        for k in range(32):
            if k + 3 < 32: rd(k + 3)
            A.wait(lg="b%d" % k)
            A.mfma(acc, w3regs[k], BF + 4 * (k % 4), acc if k else None)
            if k in hooks: hooks[k]()
            if side is not None: next(side, None)
        if side is not None: run(side)
    def swap(slot, dst, have, nxt):
        def f1(): round_tr(slot, dst, have, "sw%d" % slot)
        def f2():
            if nxt is not None:
                A.wait(lg="sw%d" % slot); round_dma(nxt, slot, "%sr%d" % nxt)
        return f1, f2
    def add_swap(hooks, k, *a):
        f1, f2 = swap(*a); hooks[k] = f1; hooks[k + 2] = f2
    def tail_phases(lead):
        A("s_lshl_b32 s%d, s%d, 16", sT2, sG)
        A("s_add_u32 s%d, s%d, s%d", sT2, sT2, sSTG)
        A("s_add_u32 s%d, s%d, 0x%x", sT2, sT2, WS_X1)
        A("s_add_u32 s%d, s%d, 0x8000", sT3, sT2)
        poll([(POLL + 4 * i, vL16, sWS, sT2 if i < 4 else sT3, KB * (i % 4)) for i in range(8)])
        stamp()
        A("v_add_u32 v%d, s%d, v%d", T0, sSTG, vL16)
        A("v_add_u32 v%d, s%d, v%d", T0 + 1, sSTG, vHI)
        for i in range(4): A.lds("ds_write_b128 v%d, %s offset:%d" % (T0 + 1, vr(POLL + 4 * i, 4), KB * i))
        for i in range(4): A.lds("ds_write_b128 v%d, %s offset:%d" % (T0, vr(POLL + 16 + 4 * i, 4), SLOT_C + KB * i))
        A("s_setprio %d", 3 if lead else 1)
        A("s_lshl_b32 s%d, s%d, 13", sT2, sG)
        A("s_add_u32 s%d, s%d, 0x%x", sT2, sT2, WS_SX)
        A("s_add_u32 s%d, s%d, 0x1000", sT3, sT2)
        A.wait(lg=None)
        A("s_barrier")
        stamp(4)
        stats_issue([POLL, POLL + 16], [sT2, sT3])
        st_side = chain(stats_fin(POLL, KA, False), stats_fin(POLL + 16, KA + 4, False))
        h0, h1 = {}, {}
        if lead:
            def h_st(): stats_in([POLL, POLL + 16], [sT2, sT3], True)
            def h_r7():
                round_tr(SLOT_A, W3R[7], "none", "sw"); A.wait(lg="sw")
                colsum(blocks([7]), False)
                A("s_nop 2")
                cs_table(CS)
                round_dma(("w4", 1), SLOT_A, "w4r1")
            h0[12] = h_st; h0[4] = h_r7
            add_swap(h0, 28, SLOT_B, W4R[0], "none", ("w4", 2))
            side0 = late(st_side, 13)
        else:
            round_dma(("w3", 5), SLOT_A, "w3r5"); round_dma(("w3", 6), SLOT_B, "w3r6")
            stats_in([POLL, POLL + 16], [sT2, sT3], True)
            run(st_side)
            round_tr(SLOT_A, W3R[5], "w3r5", "sw"); round_tr(SLOT_B, W3R[6], "w3r6", "sw"); A.wait(lg="sw")
            round_dma(("w3", 7), SLOT_A, "w3r7"); round_dma(("w4", 0), SLOT_B, "w4r0")
            round_tr(SLOT_A, W3R[7], "w3r7", "sw"); A.wait(lg="sw")
            colsum(blocks([5, 6, 7]), False)
            A("s_nop 2")
            cs_table(CS)
            round_dma(("w4", 1), SLOT_A, "w4r1")
            add_swap(h0, 4, SLOT_B, W4R[0], "w4r0", ("w4", 2))
            side0 = None
        stamp(4)
        f_pass(ACC0, vHI, 0, side0, h0)
        stamp(4)
        add_swap(h1, 0, SLOT_A, W4R[1], "w4r1", ("w4", 3))
        add_swap(h1, 6, SLOT_B, W4R[2], "w4r2", ("w4", 4))
        add_swap(h1, 16, SLOT_A, W4R[3], "w4r3", ("w4", 5))
        add_swap(h1, 24, SLOT_B, W4R[4], "w4r4", ("w4", 6))
        f_pass(ACC1, vL16, SLOT_C, late(f_epi(ACC0, KA, 0), 3), h1)
        A("s_nop 11")
        stamp(4)
        run(f_epi(ACC1, KA + 4, 1, pk=not lead))
        stamp(4)
        round_tr(SLOT_A, W4R[5], "w4r5", "sw")
        round_tr(SLOT_B, W4R[6], "w4r6", "sw")
        PR = W3R[0]; RES = W3R[7]
        A("s_add_u32 s%d, s%d, 0x%x", sT2, sOWNR, WS_H)
        A("s_add_u32 s%d, s%d, 0x%x", sT3, sOWNR, WS_X1)
        A.vmem("buffer_load_dwordx4 %s, v%d, %s, s%d offen sc1" % (vr(RES, 4), vL16, sr(sWS, 4), sT2), "res")
        A.vmem("buffer_load_dwordx4 %s, v%d, %s, s%d offen sc1" % (vr(RES + 4, 4), vL16, sr(sWS, 4), sT3), "res")
        A.wait(lg=None)
        stamp(4)
        A("s_barrier")
        stamp(); stamp(4)
        def g_out(nt):
            for mt in range(2):
                a = GACC[(nt, mt)]
                pack8(a, a); yield
                pack8(a + 8, a + 8); yield
                A("s_add_u32 s%d, s%d, 0x%x", sT2, sPRT, mt * 32 * 8192 + 2 * nt * 8192)
                A("s_add_u32 s%d, s%d, 0x2000", sT3, sT2)
                publish([(a, sWS, sT2, 0), (a + 8, sWS, sT3, 0)], sLOCS)
                yield
        def rdg(k):
            for mt in range(2):
                A.lds("ds_read_b128 %s, v%d offset:%d" % (vr(BF + 8 * (k % 2) + 4 * mt, 4), vHI, 32 * KB + (mt * 14 + k % 14) * KB), "g%d" % k)
        rdg(0)
        go = late(g_out(0), 4)
        for k in range(28):
            nt, ks = k // 14, k % 14
            if k + 1 < 28: rdg(k + 1)
            A.wait(lg="g%d" % k)
            for mt in range(2):
                a = GACC[(nt, mt)]
                A.mfma(a, W4R[ks // 2] + 8 * (ks % 2) + 4 * nt, BF + 8 * (k % 2) + 4 * mt, a if ks else None)
            if nt == 1: next(go, None)
            if k == 3:
                A.wait(vm="res")
                unpack(HP, RES, 4); unpack(RES + 8, RES + 4, 4)
            if k == 5:
                for i in range(8): A("v_add_f32 v%d, v%d, v%d", HP + i, HP + i, RES + 8 + i)
        run(go)
        A("s_nop 10")
        stamp(4)
        run(g_out(1))
        if lead: A("s_setprio 0")
        stamp(4)
        A("s_lshl_b32 s%d, s%d, 3", sT2, sOWNR)
        A("s_add_u32 s%d, s%d, 0x%x", sT2, sT2, WS_PART)
        A("s_add_u32 s%d, s%d, 4096", sT3, sT2)
        A("v_mov_b32 v%d, 0x3f80", 244)
        A("v_mov_b32 v%d, 0x3f800000", 245)
        poll([(PR + 4 * i, vL16, sWS, sT2 if i < 4 else sT3, KB * (i % 4)) for i in range(8)])
        stamp(); stamp(4)
        for p in range(8):
            if lead:
                unpack(BF, PR + 4 * p, 4)
                for i in range(8): A("v_add_f32 v%d, v%d, v%d", HP + i, HP + i, BF + i)
            else:
                for i in range(4):
                    A("v_dot2_f32_bf16 v%d, v%d, v244, v%d", HP + 2 * i, PR + 4 * p + i, HP + 2 * i)
                    A("v_dot2_f32_bf16 v%d, v%d, v245, v%d", HP + 2 * i + 1, PR + 4 * p + i, HP + 2 * i + 1)

    A("s_lshl_b32 s%d, s%d, 5", sT, sg)
    A("s_lshl_b32 s%d, s%d, 4", sT2, sKH)
    A("s_add_u32 s%d, s%d, s%d", sT, sT, sT2)
    A("s_lshl_b32 s%d, s%d, 2", sT2, sj)
    A("s_add_u32 s%d, s%d, s%d", sT, sT, sT2)
    A("s_add_u32 s%d, s%d, s%d", sT, sT, st)
    A("s_lshl_b32 s%d, s%d, 10", sOWNR, sT)
    A("s_cmp_lg_u32 s%d, 0", sKH)
    A("s_cbranch_scc1 L_fin")
    n_at_split = nstamp[0]
    vSTG, vEXW, vSH = HP, HP + 1, HP + 2
    A("s_lshl_b32 s%d, s%d, 13", sT, sW)
    A("v_add_u32 v%d, s%d, v%d", vSTG, sT, vHI)
    A("v_add_u32 v%d, s%d, v%d", vEXW, sSTG, vHI)
    colsum(wD, True)
    shifted_off(vSH)
    A("s_lshl_b32 s%d, s%d, 8", sT, sW)
    A("s_add_u32 s%d, s%d, %d", sT, sT, CSX)
    A("v_lshlrev_b32 v%d, 2, v0", T0 + 1)
    A("v_add_u32 v%d, s%d, v%d", T0 + 1, sT, T0 + 1)
    A.lds("ds_write_b32 v%d, v%d" % (T0 + 1, CSA))
    def lead_phase(name, src, wregs, after):
        if name == "E":
            A("s_lshl_b32 s%d, s%d, 13", sT2, sW)
            A("s_add_u32 s%d, s%d, 4096", sT3, sT2)
            poll([(POLL + 4 * i, vSH, sHH, sT2 if i < 4 else sT3, KB * (i % 4)) for i in range(8)])
        else:
            A("s_lshl_b32 s%d, s%d, 15", sT2, sg)
            A("s_lshl_b32 s%d, s%d, 13", sT3, sW)
            A("s_add_u32 s%d, s%d, s%d", sT2, sT2, sT3)
            A("s_add_u32 s%d, s%d, 0x%x", sT2, sT2, src)
            A("s_add_u32 s%d, s%d, 4096", sT3, sT2)
            poll([(POLL + 4 * i, vL16, sWS, sT2 if i < 4 else sT3, KB * (i % 4)) for i in range(8)])
        stamp()
        for i in range(8): A.lds("ds_write_b128 v%d, %s offset:%d" % (vSTG, vr(POLL + 4 * i, 4), KB * i))
        A("s_setprio 3")
        A.wait(lg=None)
        A("s_barrier")
        def rd(k): A.lds("ds_read_b128 %s, v%d offset:%d" % (vr(POLL + 4 * (k % 8), 4), vHI, KB * k), "b%d" % k)
        for k in range(6): rd(k)
        for k in range(16):
            if k + 6 < 16: rd(k + 6)
            A.wait(lg="b%d" % k)
            A.mfma(ACC0, wregs[k], POLL + 4 * (k % 8), ACC0 if k else None)
        A("s_nop 11")
        for i in range(4): A.lds("ds_write_b128 v%d, %s offset:%d" % (vEXW, vr(ACC0 + 4 * i, 4), 32 * KB + KB * i))
        A.wait(lg=None)
        A("s_barrier")
        A("s_setprio 0")
        stamp()
        after()
    def after_c():
        trs([W2B, W2B + 16, W3R[0]], None); A.wait(lg=None); dmas([("w3", 1), ("w3", 2), ("w3", 3)]); colsum(blocks([0]), True)
    def after_d():
        trs(W3R[1:4], None); A.wait(lg=None); dmas([("w3", 4), ("w3", 5), ("w3", 6)]); colsum(blocks([1, 2, 3]), False)
    def after_e():
        trs(W3R[4:7], None); A.wait(lg=None); dmas([("w3", 7), ("w4", 0)]); colsum(blocks([4, 5, 6]), False)
    lead_phase("C", WS_O, wC, after_c)
    lead_phase("D", WS_H, wD, after_d)
    lead_phase("E", None, wE, after_e)
    tail_phases(True)
    A("s_branch L_join")

    A.label("L_fin")
    A.vm = []; A.lg = []
    nstamp[0] = n_at_split
    BX, PART = 24, 56
    vEXR = T0
    def fin_phase(name, wregs, init, rs, pre, epi, after):
        A("s_barrier")
        stamp()
        A("s_setprio 2")
        if pre: pre()
        if rs: round_dma(("w3", rs[0]), SLOT_A, "w3n")
        def rd(k): A.lds("ds_read_b128 %s, v%d offset:%d" % (vr(BX + 4 * (k % 8), 4), vHI, KB * (16 + k)), "b%d" % k)
        for k in range(8): rd(k)
        for k in range(16):
            A.wait(lg="b%d" % k)
            A.mfma(ACC0, wregs[k], BX + 4 * (k % 8), ACC0 if (k or init) else None)
            if k + 8 < 16: rd(k + 8)
            if rs and k in (1, 3, 5, 7):
                A("s_mov_b64 exec, %s", sr(sW3M, 2))
                dma_block(sW3, vW3, sB3, (4 * rs[1] + k // 2) * 16 * 3584, SLOT_B + KB * (k // 2), "w3n")
                A("s_mov_b64 exec, -1")
            if k == 9:
                A("s_lshl_b32 s%d, s%d, 12", sT, st)
                A("v_add_u32 v%d, s%d, v%d", vEXR, sT, vHI)
                A.wait(lg=None)
                A("s_barrier")
                for i in range(4): A.lds("ds_read_b128 %s, v%d offset:%d" % (vr(PART + 4 * i, 4), vEXR, 32 * KB + KB * i), "part")
        A.wait(lg=None)
        A("s_nop 10")
        for i in range(0, 16, 2): A("v_pk_add_f32 %s, %s, %s", vr(ACC0 + i, 2), vr(ACC0 + i, 2), vr(PART + i, 2))
        epi()
        stamp()
        A("s_setprio 0")
        after()
    unpack(ACC0, XRES, 8)
    colsum(wD, True)
    def epi_c():
        pack8(HP, ACC0); pack8(HP + 4, ACC0 + 8)
        A("s_add_u32 s%d, s%d, 0x%x", sT2, sOWN2, WS_H)
        publish([(HP, sWS, sT2, 0), (HP + 4, sWS, sT2, KB)], sLOCS)
        stats_out(ACC0, WS_SH)
    def fafter_c():
        trs([W2B, W2B + 16, W3R[0]], "none")
        A("s_lshl_b32 s%d, s%d, 8", sT, st)
        A("s_add_u32 s%d, s%d, %d", sT, sT, CSX)
        A("v_lshlrev_b32 v%d, 2, v0", T0 + 1)
        A("v_add_u32 v%d, s%d, v%d", T0 + 1, sT, T0 + 1)
        A.lds("ds_read_b32 v%d, v%d" % (T0 + 2, T0 + 1))
        A.wait(lg=None)
        A("v_add_f32 v%d, v%d, v%d", CSA, CSA, T0 + 2)
        cs_table(CS)
        colsum(blocks([0]), True)
        A("s_lshl_b32 s%d, s%d, 12", sT2, sg)
        A("s_add_u32 s%d, s%d, 0x%x", sT2, sT2, WS_SH)
        stats_in([PART], [sT2])
        run(stats_fin(PART, KA, True))
        for i in range(16): A("v_mul_f32 v%d, -v%d, v%d", ACC0 + i, MU, CS + i)
    fin_phase("C", wC, True, None, None, epi_c, fafter_c)
    def epi_d():
        run(gelu_u(ACC0, 16, PART, KA, True))
        pack8(PART, ACC0); pack8(PART + 4, ACC0 + 8)
        publish([(PART, sHH, sOWN2, 0), (PART + 4, sHH, sOWN2, KB)], sLOCN)
    def fafter_d():
        trs(W3R[1:3], "w3n")
        unpack(ACC0, HP, 8)
        for i in range(0, 16, 2): A("v_pk_add_f32 %s, %s, %s op_sel_hi:[1,0] neg_lo:[0,1] neg_hi:[0,1]", vr(ACC0 + i, 2), vr(ACC0 + i, 2), vr(MU, 2))
        for i in range(0, 16, 2): A("v_pk_mul_f32 %s, %s, %s op_sel:[0,1] op_sel_hi:[1,1]", vr(ACC0 + i, 2), vr(ACC0 + i, 2), vr(MU, 2))
        A.wait(lg=None)
        colsum(blocks([1, 2]), False)
    fin_phase("D", wD, True, (1, 2), None, epi_d, fafter_d)
    def epi_e():
        pack8(PART, ACC0); pack8(PART + 4, ACC0 + 8)
        A("s_add_u32 s%d, s%d, 0x%x", sT2, sOWN2, WS_X1)
        publish([(PART, sWS, sT2, 0), (PART + 4, sWS, sT2, KB)], sLOCS)
        stats_out(ACC0, WS_SX)
    def fafter_e():
        trs(W3R[3:5], "w3n"); A.wait(lg=None); colsum(blocks([3, 4]), False)
    fin_phase("E", wE, True, (3, 4), None, epi_e, fafter_e)
    tail_phases(False)
    A.label("L_join")
    A("v_and_b32 v%d, 31, v0", T0)
    A("v_lshlrev_b32 v%d, 10, v%d", T0, T0)
    A("v_lshrrev_b32 v%d, 5, v0", T0 + 1)
    A("v_lshl_add_u32 v%d, v%d, 4, v%d", T0, T0 + 1, T0)
    A("s_lshl_b32 s%d, s%d, 15", sT2, sg)
    A("s_lshr_b32 s%d, s%d, 5", sT3, sOWNR)
    A("s_and_b32 s%d, s%d, 0x3e0", sT3, sT3)
    A("s_add_u32 s%d, s%d, s%d", sT2, sT2, sT3)
    pack8(BF, HP, False)
    A("buffer_store_dwordx4 %s, v%d, %s, s%d offen" % (vr(BF, 4), T0, sr(sOUT, 4), sT2))
    A("s_or_b32 s%d, s%d, s%d", sT, sL, sW)
    A("s_cmp_lg_u32 s%d, 0", sT)
    A("s_cbranch_scc1 L_noep")
    A("v_lshrrev_b32 v8, 1, v0")
    A("v_lshlrev_b32 v8, 7, v8")
    A("v_and_b32 v9, 1, v0")
    A("v_lshl_add_u32 v8, v9, 4, v8")
    A("s_mov_b32 s%d, 0x%x", sT, WS_STAT)
    A("s_mov_b32 s%d, 0", sCNT)
    A.label("L_ep")
    A("buffer_load_dwordx4 v[12:15], v8, %s, s%d offen sc1" % (sr(sWS, 4), sT))
    A("s_add_u32 s%d, s%d, 1", sCNT, sCNT)
    A("s_waitcnt vmcnt(0)")
    for i in range(4): A("v_xor_b32 v%d, s%d, v%d", 12 + i, sTAG, 12 + i)
    A("v_or3_b32 v12, v12, v13, v14")
    A("v_or_b32 v12, v12, v15")
    A("v_cmp_lt_u32 vcc, 7, v12")
    A("s_cbranch_vccz L_ep2")
    A("s_cmp_lt_u32 s%d, %d", sCNT, POLL_LIMIT)
    A("s_cbranch_scc1 L_ep")
    A.label("L_ep2")
    A("v_mov_b32 v9, s%d", sTAG)
    A("s_mov_b32 s%d, 0x%x", sT, WS_EPOCH)
    A("s_mov_b64 exec, 1")
    A("buffer_store_dword v9, v%d, %s, s%d offen" % (vL16, sr(sWS, 4), sT))
    A("s_mov_b64 exec, -1")
    A.label("L_noep")
    if OPT["stamps"]:
        A("s_waitcnt vmcnt(0)")
        stamp(0)
        n = nstamp[0]
        print("stamps:", n)
        A("s_lshl_b32 s%d, s%d, 3", sT, sL)
        A("s_add_u32 s%d, s%d, s%d", sT, sT, sW)
        A("s_lshl_b32 s%d, s%d, 6", sT, sT)
        A("s_add_u32 s%d, s%d, 0x%x", sT, sT, WS_STAMP)
        A("v_mov_b32 v8, 0")
        for i in range(n):
            A("v_mov_b32 v9, s%d", sSTAMP + 2 * i)
            A("buffer_store_dword v9, v8, %s, s%d offen offset:%d" % (sr(sWS, 4), sT, 4 * i))
        A("s_memrealtime s[76:77]")
        A("s_waitcnt lgkmcnt(0)")
        A("v_mov_b32 v9, s74")
        A("buffer_store_dword v9, v8, %s, s%d offen offset:56" % (sr(sWS, 4), sT))
        A("v_mov_b32 v9, s76")
        A("buffer_store_dword v9, v8, %s, s%d offen offset:60" % (sr(sWS, 4), sT))
    A.label("K_end")
    A("s_endpgm")

    A.label("L_slow")
    MX = T0
    A("v_mov_b32 v%d, 0xff800000", MX)
    A("s_mov_b32 s%d, 0x%x", sCNT, WS_KV)
    A.label("L_slow1")
    A("buffer_load_dwordx4 %s, v%d, %s, s%d offen sc1" % (vr(KF[0], 4), vL16, sr(sWS, 4), sCNT))
    A("s_waitcnt vmcnt(0)")
    A.mfma(S[0], KF[0], Q)
    A("s_add_u32 s%d, s%d, 2048", sCNT, sCNT)
    A("s_nop 11")
    for i in range(0, 16, 2): A("v_max3_f32 v%d, v%d, v%d, v%d", MX, MX, S[0] + i, S[0] + i + 1)
    A("s_cmp_lt_u32 s%d, 0x%x", sCNT, WS_KV + 64 * 2048)
    A("s_cbranch_scc1 L_slow1")
    A("v_mov_b32 v%d, v%d", MX + 1, MX)
    A("s_nop 1")
    A("v_permlane32_swap_b32 v%d, v%d", MX, MX + 1)
    A("v_max_f32 v%d, v%d, v%d", MX, MX, MX + 1)
    for i in range(16): A("v_sub_f32 v%d, 0, v%d", S[1] + i, MX)
    for i in range(16): A("v_mov_b32 v%d, 0", ACC + i)
    A("s_mov_b32 s%d, 0x%x", sCNT, WS_KV)
    A.label("L_slow2")
    A("buffer_load_dwordx4 %s, v%d, %s, s%d offen sc1" % (vr(KF[0], 4), vL16, sr(sWS, 4), sCNT))
    A("s_mov_b64 exec, %s", sr(sVM, 2))
    A("buffer_load_dwordx4 %s, v%d, %s, s%d offen offset:1024 sc1" % (vr(VF[0], 4), vL16, sr(sWS, 4), sCNT))
    A("buffer_load_dwordx4 %s, v%d, %s, s%d offen offset:768 sc1" % (vr(VF[0] + 4, 4), vL16, sr(sWS, 4), sCNT))
    A("s_mov_b64 exec, -1")
    A("s_waitcnt vmcnt(0)")
    A.mfma(S[0], KF[0], Q, S[1])
    A("s_add_u32 s%d, s%d, 2048", sCNT, sCNT)
    A("s_nop 11")
    for i in range(16): A("v_exp_f32 v%d, v%d", S[0] + i, S[0] + i)
    for i in range(8): A("v_cvt_pk_bf16_f32 v%d, v%d, v%d", S[0] + i, S[0] + 2 * i, S[0] + 2 * i + 1)
    A("s_nop 1")
    A.mfma(ACC, VF[0], S[0], ACC)
    A.mfma(ACC, VF[0] + 4, S[0] + 4, ACC)
    A("s_nop 3")
    A("s_cmp_lt_u32 s%d, 0x%x", sCNT, WS_KV + 64 * 2048)
    A("s_cbranch_scc1 L_slow2")
    A("s_nop 11")
    A("s_branch L_attn_done")
    A.label("L_codeend")
    return A

def main():
    A = gen()
    out = OPT.get("out", "cdna_kernels/%s.s" % NAME)
    head = open("cdna_kernels/%s.s.ref" % NAME).read().split("\n")
    hdr = [l for l in head if l.startswith(";") and "@launch" not in l and "Override" not in l and "grid=ceil" not in l]
    body = [l.replace("CODE_SPAN", "0x7000") for l in A.L]
    tmp = '.amdgcn_target "amdgcn-amd-amdhsa--gfx950"\n.text\n' + "\n".join(body) + "\n"
    open("_k.s", "w").write(tmp)
    sz = [x[1] for x in inst_sizes("_k.s", "_k.o")]
    ni = sum(1 for l in body if is_inst(l))
    assert ni == len(sz), (ni, len(sz))
    span = (sum(sz) - 1024) & ~127
    body = [l.replace("CODE_SPAN", "0x%x" % span) for l in A.L]
    npad = 0
    if OPT["align"]: body, npad = align8(body, sz)
    print("%d instrs, %d bytes, %d pad nops" % (ni, sum(sz), npad))
    k = NAME + "_kernel"
    s = "\n".join(hdr) + "\n; @launch grid=(256,1,1) block=(512,1,1) lds=163840\n"
    s += '.amdgcn_target "amdgcn-amd-amdhsa--gfx950"\n.text\n.globl %s\n.p2align 8\n.type %s,@function\n%s:\n' % (k, k, k)
    s += "\n".join(body) + "\n"
    s += """.section .rodata,"a"
.p2align 6
.amdhsa_kernel %s
  .amdhsa_next_free_vgpr 256
  .amdhsa_next_free_sgpr 102
  .amdhsa_accum_offset 256
  .amdhsa_group_segment_fixed_size 0
  .amdhsa_kernarg_size 104
  .amdhsa_user_sgpr_count 2
  .amdhsa_user_sgpr_kernarg_segment_ptr 1
  .amdhsa_system_sgpr_workgroup_id_x 1
.end_amdhsa_kernel
""" % k
    open(out, "w").write(s)
    for p in hazard.check(s): print("HAZARD", p)
main()
```

```python
import sys, os, struct
sys.path.insert(0, os.path.dirname(os.path.abspath(__file__)))
from asmlib import *
import hazard

NAME = "sequential_preLN__grouped_kv_mqa__mixer_s_mlp__prompt"
OPT = dict(local=1, stamps=0, align=1, dbgq=0)
for a in sys.argv[1:]:
    if "=" in a:
        k, v = a.split("="); OPT[k] = int(v) if v.lstrip("-").isdigit() else v

def f32(x): return "0x%08x" % struct.unpack("<I", struct.pack("<f", x))[0]
LOG2E = 1.4426950408889634
QSCALE = 0.25 * LOG2E
GA = -2.0 * LOG2E * 0.7978845608028654
GB = GA * 0.044715
EPS = 1e-5
ONES = 0x3f803f80
WS_QF, WS_KV, WS_O, WS_H, WS_HH, WS_X1, WS_PART, WS_END = 0x0, 0x200000, 0x400000, 0x600000, 0x800000, 0xA00000, 0x1000000, 0x2000000
WS_STAMP = 0xC00000
WS_SH, WS_SX = 0xD00000, 0xD40000
WS_KVF, WS_STAT, WS_EPOCH = 0xE00000, 0xE01000, 0xE02000
TAGSTEP = 0x9E3779B8
WS_GF, WS_CS = 0xE10000, 0xE40000
WS_PX, WS_GX = 0x1000000, 0x1200000
POLL_LIMIT = 200000
KB = 1024

def gen():
    A = Asm()
    sX, sWO, sW1, sW2, sW3, sW4, sWS, sHH, sOUT = 4, 8, 12, 16, 20, 24, 28, 32, 36
    sTAG, sOWNR, sSTP, sROT = 40, 41, 42, 43
    sRET = 74
    sWQ, sWKV = sHH, sOUT
    sL, sG, sJJ, sg, sj, sW, st, sKH, sIDX, sSTG = 44, 45, 46, 47, 48, 49, 50, 51, 52, 53
    sB512, sB3, sB4, sOWN, sOWN2, sT, sT2, sT3 = 54, 55, 56, 57, 58, 59, 60, 61
    sVM = 62
    sLOCS, sLOCN, sNIB, sCNT, sOFR, sPRT, sGB = 64, 65, 66, 67, 68, 69, 70
    sW3M = 72
    sPTR = 76
    sSTAMP = 76
    WKV0, XN, WQ0, EX2, EX = 0, 16 * KB, 16 * KB + 67584, 149504, 128 * KB
    SLOT_B, SLOT_C, ACT0, EXCH, CSX, STATS, SLOT_A = 0, 32 * KB, 64 * KB, 96 * KB, 112 * KB, 124 * KB, 128 * KB
    GBUF = EXCH
    vL16, vHI, vW, vTR, vTRA, vW3, vTCH = 1, 2, 3, 4, 5, 6, 7
    S = [8, 24]; ACC = 40; Q = 56; KF = [60, 72]; VF = [64, 76]
    WO, W1, W2A, SENT, XRES = 84, 148, 212, 244, 244
    T0 = 252
    W2B, CS = 84, 116
    W3R = [132, 148, 164, 180, 196, 212, 228, 84]
    nstamp = [0]
    def stamp(lvl=1):
        if not OPT["stamps"] or (lvl != OPT["stamps"] and lvl != 0): return
        assert nstamp[0] < 24
        A("s_memtime s[100:101]")
        A("s_waitcnt lgkmcnt(0)"); A.lg = []
        A("s_mov_b32 s%d, s100", sSTAMP + nstamp[0])
        nstamp[0] += 1
    def srd(d, b, nbytes):
        A("s_mov_b32 s%d, s%d", d, b)
        A("s_mov_b32 s%d, s%d", d + 1, b + 1)
        A("s_mov_b32 s%d, 0x%x", d + 2, nbytes)
        A("s_mov_b32 s%d, 0x00020000", d + 3)
    def tr_lane(dst, tmp, rowb):
        sh = {64: 6, 32: 5}[rowb]
        A("v_lshrrev_b32 v%d, 5, v0", dst)
        A("v_lshlrev_b32 v%d, %d, v%d", dst, sh + 3, dst)
        A("v_bfe_u32 v%d, v0, 2, 2", tmp)
        A("v_lshl_add_u32 v%d, v%d, %d, v%d", dst, tmp, sh, dst)
        A("v_and_b32 v%d, 1, v0", tmp)
        A("v_lshl_add_u32 v%d, v%d, 4, v%d", dst, tmp, dst)
        A("v_bfe_u32 v%d, v0, 1, 1", tmp)
        A("v_lshl_add_u32 v%d, v%d, 3, v%d", dst, tmp, dst)
    def run(gen):
        for _ in gen: pass
    def chain(*gens):
        for g in gens:
            if g is None: continue
            for _ in g: yield
    def dma_block(srdreg, voff, sbase, const, lds_const, tag):
        if OPT.get("x_now3", 0) and tag == "w3n": return
        if OPT.get("x_now4", 0) and str(tag).startswith("w4"): return
        A("s_add_u32 m0, s%d, %d", sSTG, lds_const)
        A("s_add_u32 s%d, s%d, %d", sT, sbase, const)
        nt = " nt" if ((OPT.get("nt", 0) & 1 and srdreg == sW3) or (OPT.get("nt", 0) & 2 and srdreg in (sWO, sW1, sW2))) else ""
        A.vmem("buffer_load_dwordx4 v%d, %s, s%d offen%s lds" % (voff, sr(srdreg, 4), sT, nt), tag)
    sR3 = 74
    def w3_base(r):
        A("s_add_u32 s%d, s%d, %d", sR3, sROT, r)
        A("s_and_b32 s%d, s%d, 7", sR3, sR3)
        A("s_mul_i32 s%d, s%d, %d", sR3, sR3, 64 * 3584)
        A("s_add_u32 s%d, s%d, s%d", sR3, sR3, sB3)
    def round_dma(kind, slot, tag):
        if OPT.get("x_nodma", 0) and kind[0] == "w4": return
        if kind[0] == "w3":
            w3_base(kind[1])
            A("s_mov_b64 exec, %s", sr(sW3M, 2))
        for i in range(4):
            if kind[0] == "sq": dma_block(kind[1], vW, sB512, (4 * kind[2] + i) * 16384, slot + KB * i, tag)
            elif kind[0] == "w3": dma_block(sW3, vW3, sR3, i * 16 * 3584, slot + KB * i, tag)
            else:
                n = 4 * kind[1] + i
                dma_block(sW4, vW, (sB4, sPRT)[n // 14], (n % 14) * 16384, slot + KB * i, tag)
        if kind[0] == "w3": A("s_mov_b64 exec, -1")
    def round_tr(slot, dst, tag_vm, tag_lg):
        A.wait(vm=tag_vm)
        if OPT.get("x_notr", 0) and str(tag_vm).startswith("w4"): return
        base, off = (vTRA, 0) if slot == SLOT_A else (vTR, slot)
        for i in range(4):
            A.lds("ds_read_b64_tr_b16 %s, v%d offset:%d" % (vr(dst + 4 * i, 2), base, off + KB * i), tag_lg)
            A.lds("ds_read_b64_tr_b16 %s, v%d offset:%d" % (vr(dst + 4 * i + 2, 2), base, off + KB * i + 256), tag_lg)
    def publish(items, loc):
        def emit(fl, track):
            for (data, sd, soff, imm) in items:
                s = "buffer_store_dwordx4 %s, v%d, %s, s%d offen offset:%d%s" % (vr(data, 4), vL16, sr(sd, 4), soff, imm, fl)
                if track: A.vmem(s, "pub")
                else: A(s)
        if not OPT["local"]:
            emit(" sc1", True); return
        l1, l2 = A.newlabel("Lp"), A.newlabel("Lq")
        A("s_cmp_eq_u32 s%d, 1", loc)
        A("s_cbranch_scc1 %s", l1)
        emit(" sc1", False)
        A("s_branch %s", l2)
        A.label(l1)
        emit("", True)
        A.label(l2)
    def poll_issue(loads, tag):
        for (dst, voff, sd, soff, imm) in loads:
            x = "buffer_load_dwordx4 %s, v%d, %s, s%d offen offset:%d sc1" % (vr(dst, 4), voff, sr(sd, 4), soff, imm)
            if tag: A.vmem(x, tag)
            else: A(x)
    def poll(loads, issued=None, every=False):
        l1, l2, l3 = A.newlabel("Lw"), A.newlabel("Lg"), A.newlabel("Lf")
        A("s_mov_b32 s%d, 0", sCNT)
        if issued:
            A.wait(vm=issued)
            A("s_branch %s", l3)
        A.label(l1)
        poll_issue(loads, None)
        A("s_add_u32 s%d, s%d, 1", sCNT, sCNT)
        A("s_waitcnt vmcnt(0)")
        if not issued: A.vm = []
        A.label(l3)
        d = [x[0] + i for x in loads for i in range(4 if every else 1)]
        A("v_max_u32 v%d, v%d, v%d", T0, d[0], d[1])
        for k in range(2, len(d), 2): A("v_max3_u32 v%d, v%d, v%d, v%d", T0, T0, d[k], d[k + 1])
        A("v_cmp_eq_u32 vcc, -1, v%d", T0)
        A("s_cbranch_vccz %s", l2)
        A("s_cmp_lt_u32 s%d, %d", sCNT, POLL_LIMIT)
        A("s_cbranch_scc1 %s", l1)
        A.label(l2)

    A("s_cmp_ge_u32 s2, 256")
    A("s_cbranch_scc1 K_end")
    A("s_load_dwordx16 s[76:91], s[0:1], 0")
    A("s_load_dwordx8 s[92:99], s[0:1], 64")
    A("s_load_dwordx2 s[100:101], s[0:1], 96")
    if OPT["stamps"]: A("s_memrealtime s[66:67]"); A("s_memtime s[70:71]")
    A("v_lshrrev_b32 v2, 6, v0")
    A("v_and_b32 v0, 63, v0")
    A("v_readfirstlane_b32 s%d, v2", sW)
    A("s_and_b32 s%d, s2, 7", sT)
    A("s_lshl_b32 s%d, s%d, 5", sT, sT)
    A("s_lshr_b32 s%d, s2, 3", sIDX)
    A("s_add_u32 s%d, s%d, s%d", sL, sT, sIDX)
    A("s_lshr_b32 s%d, s%d, 3", sG, sL)
    A("s_and_b32 s%d, s%d, 7", sJJ, sL)
    A("v_lshlrev_b32 v%d, 4, v0", vL16)
    A("s_getpc_b64 s[%d:%d]", sW3M, sW3M + 1)
    A("s_and_b32 s%d, s%d, 1", sT, sIDX)
    A("s_lshl_b32 s%d, s%d, 3", sT, sT)
    A("s_add_u32 s%d, s%d, s%d", sT, sT, sW)
    A("s_lshl_b32 s%d, s%d, 12", sT, sT)
    A("v_and_b32 v13, 31, v0")
    A("v_lshlrev_b32 v13, 7, v13")
    A("v_add_u32 v14, s%d, v13", sT)
    A("v_min_u32 v14, CODE_SPAN, v14")
    A.vmem("global_load_dword v62, v14, s[%d:%d]" % (sW3M, sW3M + 1), "ct")
    A("v_lshrrev_b32 v9, 4, v0")
    A("v_and_b32 v10, 15, v0")
    A("v_lshlrev_b32 v8, 10, v9")
    A("v_lshl_add_u32 v8, v10, 4, v8")
    A("s_and_b32 s%d, s%d, 1", sj, sJJ)
    A("s_lshl_b32 s%d, s%d, 16", sT2, sG)
    A("s_lshl_b32 s%d, s%d, 12", sSTG, sW)
    A("s_add_u32 s%d, s%d, s%d", sT2, sT2, sSTG)
    A("s_lshl_b32 s%d, s%d, 15", sT3, sj)
    A("s_add_u32 s%d, s%d, s%d", sT2, sT2, sT3)
    A("s_xor_b32 s%d, s%d, 0x8000", sT3, sT2)
    A("v_lshrrev_b32 v11, 2, v0")
    A("v_and_b32 v12, 3, v0")
    A("v_lshlrev_b32 v12, 4, v12")
    A("v_lshl_add_u32 v%d, v11, 10, v12", vW)
    A("s_waitcnt lgkmcnt(0)")
    srd(sX, sPTR, 2048 * KB)
    A("s_add_u32 s%d, s%d, 0x%x", sVM, sPTR + 24, WS_EPOCH)
    A("s_addc_u32 s%d, s%d, 0", sVM + 1, sPTR + 25)
    XA, XB = 16, 32
    for i in range(4):
        A.vmem("buffer_load_dwordx4 %s, v8, %s, s%d offen offset:%d" % (vr(XA + 4 * i, 4), sr(sX, 4), sT2, 256 * i), "xa")
    A("s_load_dword s%d, s[%d:%d], 0", sTAG, sVM, sVM + 1)
    A("s_cmp_lt_u32 s%d, 2", sJJ)
    A("s_cselect_b32 s%d, s%d, s%d", sWKV, sPTR + 4, sPTR + 6)
    A("s_cselect_b32 s%d, s%d, s%d", sWKV + 1, sPTR + 5, sPTR + 7)
    A("s_mov_b32 s%d, 0x%x", sWKV + 2, 512 * 32)
    A("s_mov_b32 s%d, 0x00020000", sWKV + 3)
    A("s_lshl_b32 s%d, s%d, 11", sT, sW)
    A("s_add_u32 m0, s%d, %d", sT, WKV0)
    A("s_cmp_lt_u32 s%d, 4", sJJ)
    A("s_cselect_b64 exec, -1, 0")
    for i in range(2):
        A.vmem("buffer_load_dwordx4 v%d, %s, s%d offen offset:%d lds" % (vL16, sr(sWKV, 4), sT, KB * i), "wkv")
    A("s_mov_b64 exec, -1")
    srd(sWQ, sPTR + 2, 512 * KB)
    A("s_lshl_b32 s%d, s%d, 14", sT2, sIDX)
    A("s_add_u32 s%d, s%d, s%d", sT2, sT2, sT)
    A("s_mov_b64 exec, 0xffff")
    A.vmem("buffer_load_dword v63, v13, %s, s%d offen" % (sr(sWQ, 4), sT2), "wqt")
    A("s_mov_b64 exec, -1")
    A("s_barrier")
    for i in range(4):
        A.vmem("buffer_load_dwordx4 %s, v8, %s, s%d offen offset:%d" % (vr(XB + 4 * i, 4), sr(sX, 4), sT3, 256 * i), "xb")
    aKH, aNT = sOWN, sOWN2
    A("s_and_b32 s%d, s%d, 1", aKH, sW)
    A("s_bfe_u32 s%d, s%d, 0x10001", aNT, sW)
    A("s_lshr_b32 s%d, s%d, 2", sKH, sW)
    A("s_lshr_b32 s%d, s%d, 1", sT2, sW)
    A("s_lshl_b32 s%d, s%d, 13", sOFR, sT2)
    A("s_lshl_b32 s%d, s%d, 15", sT, aKH)
    A("s_add_u32 s%d, s%d, s%d", sOFR, sOFR, sT)
    A("s_lshl_b32 s%d, s%d, 17", sT2, sT2)
    A("s_lshl_b32 s%d, s%d, 7", sT, sJJ)
    A("s_add_u32 s%d, s%d, s%d", sT2, sT2, sT)
    A("s_lshl_b32 s%d, s%d, 6", sT, aKH)
    A("s_add_u32 s%d, s%d, s%d", sPRT, sT2, sT)
    def wq_dma(lo, hi):
        for i in range(lo, hi):
            if i % 4 == 0: A("s_add_u32 m0, s%d, %d", sOFR, WQ0 + KB * i)
            A("s_add_u32 s%d, s%d, %d", sT, sPRT, i * 16384 - (i % 4) * KB)
            A.vmem("buffer_load_dwordx4 v%d, %s, s%d offen offset:%d lds" % (vW, sr(sWQ, 4), sT, (i % 4) * KB), "wq")
    srd(sWS, sPTR + 24, WS_END)
    srd(sWO, sPTR + 8, 512 * KB)
    srd(sW1, sPTR + 12, 512 * KB)
    srd(sW2, sPTR + 14, 512 * KB)
    srd(sW3, sPTR + 16, 512 * 3584)
    srd(sW4, sPTR + 18, 1792 * KB)
    A("s_mov_b32 s%d, s%d", sB3, sPTR + 20)
    A("s_mov_b32 s%d, s%d", sB4, sPTR + 21)
    if OPT["stamps"]:
        A("s_mov_b32 s%d, s70", sSTAMP); nstamp[0] = 1
        A("s_mov_b32 s3, s66")
    A("s_mul_i32 s%d, s%d, 33792", sT, sj)
    A("s_lshl_b32 s%d, s%d, 6", sT2, sW)
    A("s_add_u32 s%d, s%d, s%d", sT2, sT2, sT)
    A("s_add_u32 s%d, s%d, %d", sT2, sT2, XN)
    A("v_mul_u32_u24 v11, 528, v10")
    A("v_lshl_add_u32 v11, v9, 4, v11")
    A("v_add_u32 v12, s%d, v11", sT2)
    A("s_sub_u32 s%d, s%d, s%d", sT2, sT2, sT)
    A("s_sub_u32 s%d, s%d, s%d", sT2, sT2, sT)
    A("s_add_u32 s%d, s%d, 33792", sT2, sT2)
    A("v_add_u32 v11, s%d, v11", sT2)
    A("v_lshrrev_b32 v9, 5, v0")
    A("v_mul_u32_u24 v9, 528, v9")
    A("v_and_b32 v10, 31, v0")
    A("v_lshl_add_u32 v9, v10, 4, v9")
    A("s_mul_i32 s%d, s%d, %d", sT2, sW, 8 * 1056)
    A("s_add_u32 s%d, s%d, s%d", sT2, sT2, sT)
    A("s_add_u32 s%d, s%d, %d", sT2, sT2, XN)
    A("v_add_u32 v10, s%d, v9", sT2)
    A("s_mul_i32 s%d, s%d, 33792", sT, sKH)
    A("s_mul_i32 s%d, s%d, %d", sT2, aKH, 16 * 1056)
    A("s_add_u32 s%d, s%d, s%d", sT2, sT2, sT)
    A("s_add_u32 s%d, s%d, %d", sT2, sT2, XN)
    A("v_add_u32 v9, s%d, v9", sT2)
    tr_lane(13, 14, 32)
    A("v_add_u32 v13, s%d, v13", sSTG)
    tr_lane(vTR, 14, 64)
    A("v_bfe_u32 v14, v0, 4, 1")
    A("v_xor_b32 v15, s%d, v14", aKH)
    A("v_lshl_add_u32 v8, v15, 5, v%d", vTR)
    A("v_lshl_add_u32 v%d, v14, 5, v%d", vTR, vTR)
    A("s_lshl_b32 s%d, s%d, 15", sT, aNT)
    A("s_lshl_b32 s%d, s%d, 14", sT2, aKH)
    A("s_add_u32 s%d, s%d, s%d", sT, sT, sT2)
    A("s_add_u32 s%d, s%d, %d", sT, sT, WQ0)
    A("v_add_u32 v8, s%d, v8", sT)
    A("v_add_u32 v%d, s%d, v%d", vTR, sSTG, vTR)
    A("v_add_u32 v%d, 0x%x, v%d", vTRA, SLOT_A, vTR)
    A("v_add_u32 v%d, 0x10000, v%d", vHI, vL16)
    A("v_mov_b32 v15, 0x%x", ONES)
    def normalize_body():
        X, Y = XA, 224
        s1, s2, r0, tt = 48, 49, 50, 52
        for i in range(16):
            A("v_dot2_f32_bf16 v%d, v%d, v15, %s", s1, X + i, "v%d" % s1 if i else "0")
            A("v_dot2_f32_bf16 v%d, v%d, v%d, %s", s2, X + i, X + i, "v%d" % s2 if i else "0")
        A("s_nop 2")
        for mod in ("quad_perm:[1,0,3,2]", "quad_perm:[2,3,0,1]", "row_half_mirror", "row_mirror"):
            A("v_add_f32_dpp v%d, v%d, v%d %s row_mask:0xf bank_mask:0xf", s1, s1, s1, mod)
            A("v_add_f32_dpp v%d, v%d, v%d %s row_mask:0xf bank_mask:0xf", s2, s2, s2, mod)
            A("s_nop 0")
        A("v_mul_f32 v%d, %s, v%d", s1, f32(1.0 / 512), s1)
        A("v_mul_f32 v%d, %s, v%d", s2, f32(1.0 / 512), s2)
        A("v_fma_f32 v%d, -v%d, v%d, v%d", s2, s1, s1, s2)
        A("v_max_f32 v%d, 0, v%d", s2, s2)
        A("v_add_f32 v%d, %s, v%d", s2, f32(EPS), s2)
        A("v_rsq_f32 v%d, v%d", r0, s2)
        A("s_nop 0")
        A("v_mul_f32 v%d, v%d, v%d", s1, s1, r0)
        for i in range(4):
            for d in range(4):
                A("v_lshlrev_b32 v%d, 16, v%d", tt + 2 * d, X + 4 * i + d)
                A("v_and_b32 v%d, 0xffff0000, v%d", tt + 2 * d + 1, X + 4 * i + d)
            for d in range(4):
                A("v_pk_fma_f32 %s, %s, %s, %s op_sel_hi:[1,0,0] neg_lo:[0,0,1] neg_hi:[0,0,1]", vr(tt + 2 * d, 2), vr(tt + 2 * d, 2), vr(r0, 2), vr(s1, 2))
            for d in range(4):
                A("v_cvt_pk_bf16_f32 v%d, v%d, v%d", Y + 4 * i + d, tt + 2 * d, tt + 2 * d + 1)
            A("ds_write_b128 v12, %s offset:%d" % (vr(Y + 4 * i, 4), 8448 * i))
        A("s_waitcnt lgkmcnt(0)")
        A("s_setpc_b64 %s", sr(sRET, 2))
    def normalize(second):
        if second:
            for i in range(16): A("v_mov_b32 v%d, v%d", XA + i, XB + i)
            A("v_mov_b32 v12, v11")
        A("s_call_b64 %s, L_norm", sr(sRET, 2))
        A.lg = []
    A.wait(vm="xa")
    stamp(3)
    normalize(False)
    A("s_add_u32 s%d, s%d, 0x%x", sTAG, sTAG, TAGSTEP)
    A("s_and_b32 s%d, s%d, -8", sTAG, sTAG)
    A.wait(vm="wkv")
    A("s_barrier")
    stamp(3)
    AF, BFA, ACC2, QACC = 64, 128, 192, 208
    A("s_cmp_lt_u32 s%d, 4", sJJ)
    A("s_cselect_b32 s%d, s%d, 8", sCNT, sW)
    A("s_cmp_ge_u32 s%d, 4", sCNT)
    A("s_cbranch_scc1 LA_nochain")
    A("s_setprio 3")
    for i in range(8):
        A("ds_read_b64_tr_b16 %s, v13 offset:%d" % (vr(AF + 4 * i, 2), 512 * i))
        A("ds_read_b64_tr_b16 %s, v13 offset:%d" % (vr(AF + 4 * i + 2, 2), 512 * i + 128))
        A("ds_read_b128 %s, v10 offset:%d" % (vr(BFA + 4 * i, 4), 1056 * i))
    A("s_lshl_b32 s%d, s%d, 11", sT, sW)
    A("s_add_u32 s%d, s%d, %d", sT, sT, EX2)
    A("v_add_u32 v14, s%d, v%d", sT, vL16)
    A("s_cmp_lt_u32 s%d, 2", sJJ)
    A("s_cbranch_scc0 LA_v")
    for i in range(8):
        A("s_waitcnt lgkmcnt(%d)", min(15, 3 * (7 - i)))
        A.mfma(ACC2, AF + 4 * i, BFA + 4 * i, ACC2 if i else None)
    A("s_nop 11")
    A("s_branch LA_part")
    A.label("LA_v")
    for i in range(8):
        A("s_waitcnt lgkmcnt(%d)", min(15, 3 * (7 - i)))
        A.mfma(ACC2, BFA + 4 * i, AF + 4 * i, ACC2 if i else None)
    A("v_and_b32 v60, 16, v0")
    A("v_cmp_eq_u32 vcc, 0, v60")
    A("s_nop 9")
    for i in range(8): A("v_cndmask_b32 v%d, v%d, v%d, vcc", ACC2 + i, ACC2 + i, ACC2 + 8 + i)
    A.label("LA_part")
    A("ds_write_b128 v14, %s" % vr(ACC2, 4))
    A("ds_write_b128 v14, %s offset:1024" % vr(ACC2 + 4, 4))
    A("s_waitcnt lgkmcnt(0)")
    A("s_setprio 0")
    A("s_barrier")
    wq_dma(0, 8)
    A("s_branch LA_join")
    A.label("LA_nochain")
    A("s_cmp_eq_u32 s%d, 4", sCNT)
    A("s_cbranch_scc1 LA_fin")
    wq_dma(0, 8)
    A("s_barrier")
    A("s_branch LA_join")
    A.label("LA_fin")
    A("s_setprio 3")
    A("v_add_u32 v14, 0x%x, v%d", EX2, vL16)
    A("s_barrier")
    for p in range(4):
        for i in range(2):
            A("ds_read_b128 %s, v14 offset:%d" % (vr(AF + 8 * p + 4 * i, 4), 2048 * p + KB * i))
    A("s_lshl_b32 s%d, s%d, 1", sT, sG)
    A("s_add_u32 s%d, s%d, s%d", sT, sT, sj)
    A("s_lshl_b32 s%d, s%d, 1", sT, sT)
    A("s_lshr_b32 s%d, s%d, 1", sT2, sJJ)
    A("s_add_u32 s%d, s%d, s%d", sT, sT, sT2)
    A("s_lshl_b32 s%d, s%d, 10", sT2, sT)
    A("s_add_u32 s%d, s%d, 0x%x", sT2, sT2, WS_KV)
    A("s_waitcnt lgkmcnt(0)")
    for i in range(0, 8, 2):
        A("v_pk_add_f32 %s, %s, %s", vr(AF + i, 2), vr(AF + i, 2), vr(AF + 8 + i, 2))
        A("v_pk_add_f32 %s, %s, %s", vr(AF + 16 + i, 2), vr(AF + 16 + i, 2), vr(AF + 24 + i, 2))
    for i in range(0, 8, 2): A("v_pk_add_f32 %s, %s, %s", vr(AF + i, 2), vr(AF + i, 2), vr(AF + 16 + i, 2))
    for i in range(4): A("v_cvt_pk_bf16_f32 v%d, v%d, v%d", AF + 8 + i, AF + 2 * i, AF + 2 * i + 1)
    A("buffer_store_dwordx4 %s, v%d, %s, s%d offen sc1" % (vr(AF + 8, 4), vL16, sr(sWS, 4), sT2))
    wq_dma(0, 8)
    A("v_mov_b32 v60, s%d", sTAG)
    A("s_lshl_b32 s%d, s%d, 7", sT, sG)
    A("s_lshl_b32 s%d, s%d, 2", sT2, sJJ)
    A("s_add_u32 s%d, s%d, s%d", sT, sT, sT2)
    A("s_add_u32 s%d, s%d, 0x%x", sT, sT, WS_KVF)
    A("s_waitcnt vmcnt(8)")
    A("s_mov_b64 exec, 1")
    A("buffer_store_dword v60, v%d, %s, s%d offen sc1" % (vL16, sr(sWS, 4), sT))
    A("s_mov_b64 exec, -1")
    A("s_setprio 0")
    normalize(True)
    A("s_waitcnt vmcnt(1)")
    A("s_branch LA_join2")
    A.label("L_norm")
    normalize_body()
    A.label("LA_join")
    A("s_waitcnt vmcnt(8)")
    normalize(True)
    stamp(3)
    A("s_waitcnt vmcnt(0)")
    A.label("LA_join2")
    A.vm = []; A.lg = []
    A("s_barrier")
    stamp(3)
    def rd(i):
        A.lds("ds_read_b64_tr_b16 %s, v8 offset:%d" % (vr(AF + 4 * i, 2), KB * i), i)
        A.lds("ds_read_b64_tr_b16 %s, v8 offset:%d" % (vr(AF + 4 * i + 2, 2), KB * i + 256), i)
        A.lds("ds_read_b128 %s, v9 offset:%d" % (vr(BFA + 4 * i, 4), 1056 * i), i)
    def setup_rest():
        A("s_add_u32 s%d, s%d, 0x%x", sHH, sWS, WS_HH)
        A("s_addc_u32 s%d, s%d, 0", sHH + 1, sWS + 1)
        A("s_mov_b32 s%d, 0x%x", sHH + 2, 2048 * KB)
        A("s_mov_b32 s%d, 0x00020000", sHH + 3)
        yield
        srd(sOUT, sB3, 2048 * KB)
        yield
        A("s_lshr_b32 s%d, s%d, 2", sg, sL)
        A("s_and_b32 s%d, s%d, 3", sj, sL)
        A("s_and_b32 s%d, s%d, 3", st, sW)
        if OPT.get("rot", 1): A("s_lshr_b32 s%d, s%d, 2", sROT, sG)
        else: A("s_and_b32 s%d, s%d, 7", sROT, sG)
        yield
        A("s_lshl_b32 s%d, s%d, 18", sB512, sKH)
        A("s_lshl_b32 s%d, s%d, 8", sT, sj)
        A("s_add_u32 s%d, s%d, s%d", sB512, sB512, sT)
        A("s_lshl_b32 s%d, s%d, 6", sT, st)
        A("s_add_u32 s%d, s%d, s%d", sB512, sB512, sT)
        yield
        A("s_mul_i32 s%d, s%d, 448", sB3, sJJ)
        A("s_min_u32 s%d, s%d, 6", sT, sW)
        A("s_lshl_b32 s%d, s%d, 6", sT, sT)
        A("s_add_u32 s%d, s%d, s%d", sB3, sB3, sT)
        yield
        A("s_and_b32 s%d, s%d, 0x3ff", sT3, sB512)
        A("s_and_b32 s%d, s%d, 4", sT2, sJJ)
        for i, d in enumerate((sB4, sPRT)):
            A("s_lshl_b32 s%d, s%d, 1", sT, sKH)
            A("s_add_u32 s%d, s%d, s%d", sT, sT, sj)
            if i: A("s_add_u32 s%d, s%d, 1", sT, sT)
            A("s_and_b32 s%d, s%d, 3", sT, sT)
            A("s_add_u32 s%d, s%d, s%d", sT, sT, sT2)
            A("s_mul_i32 s%d, s%d, %d", d, sT, 224 * KB)
            A("s_add_u32 s%d, s%d, s%d", d, d, sT3)
            yield
        A("s_lshl_b32 s%d, s%d, 1", sT, sG)
        A("s_add_u32 s%d, s%d, s%d", sT, sT, sKH)
        A("s_lshl_b32 s%d, s%d, 5", sT, sT)
        A("s_lshl_b32 s%d, s%d, 2", sT2, sJJ)
        yield
        A("s_add_u32 s%d, s%d, s%d", sT, sT, sT2)
        A("s_add_u32 s%d, s%d, s%d", sT, sT, st)
        A("s_lshl_b32 s%d, s%d, 10", sT, sT)
        A("s_add_u32 s%d, s%d, 0x%x", sOFR, sT, WS_O)
        yield
        A("s_mov_b32 s%d, 0xffff0000", sVM)
        A("s_mov_b32 s%d, 0xffff0000", sVM + 1)
        yield
        A("s_mov_b32 s%d, %s", sGB, f32(GB))
        A("s_mov_b32 s%d, %s", sGB + 1, f32(GB))
        A("s_getreg_b32 s%d, hwreg(HW_REG_XCC_ID)", sNIB)
        A("s_and_b32 s%d, s%d, 7", sNIB, sNIB)
        A("s_or_b32 s%d, s%d, s%d", sNIB, sNIB, sTAG)
        yield
        A("s_cmp_lg_u32 s%d, 7", sW)
        A("s_cselect_b64 %s, -1, 0", sr(sW3M, 2))
        A("v_lshrrev_b32 v%d, 2, v0", vW3)
        A("v_mul_u32_u24 v%d, 3584, v%d", vW3, vW3)
        A("v_and_b32 v14, 3, v0")
        A("v_lshl_add_u32 v%d, v14, 4, v%d", vW3, vW3)
        yield
        A("v_lshlrev_b32 v%d, 7, v0", vTCH)
        A("v_and_b32 v14, 32, v0")
        A("v_lshl_or_b32 v%d, v14, 25, v%d", vTCH, vTCH)
        yield
        A("s_lshl_b32 s%d, s%d, 11", sT, sW)
        A("s_add_u32 s%d, s%d, %d", sT, sT, EX)
        A("v_add_u32 v12, s%d, v%d", sT, vL16)
        A("v_xor_b32 v13, 0x800, v12")
        yield
    su = setup_rest()
    D = 4
    for i in range(D): rd(i)
    for i in range(16):
        if i + D < 16: rd(i + D)
        A.wait(lg=i)
        A.mfma(QACC, AF + 4 * i, BFA + 4 * i, QACC if i else None)
        next(su, None)
    run(su)
    A("s_lshl_b32 s%d, s%d, 13", sT, sL)
    A("s_lshl_b32 s%d, s%d, 10", sT3, sW)
    A("s_add_u32 s%d, s%d, s%d", sOWN, sT, sT3)
    A("s_lshl_b32 s%d, s%d, 11", sT2, st)
    A("s_add_u32 s%d, s%d, s%d", sOWN2, sT, sT2)
    A("s_barrier")
    stamp(3)
    A("s_nop 4")
    A.lds("ds_write_b128 v12, %s" % vr(QACC + 8, 4))
    A.lds("ds_write_b128 v12, %s offset:1024" % vr(QACC + 12, 4))
    A("s_cmp_lg_u32 s%d, 0", sW)
    A("s_cbranch_scc1 LA_kvok")
    A("v_and_b32 v14, 31, v0")
    A("v_lshlrev_b32 v14, 7, v14")
    A("s_mov_b32 s%d, 0", sCNT)
    A("s_mov_b32 s%d, 0x%x", sT, WS_KVF)
    A.label("LA_kvw")
    A("buffer_load_dwordx4 v[16:19], v14, %s, s%d offen sc1" % (sr(sWS, 4), sT))
    A("s_add_u32 s%d, s%d, 1", sCNT, sCNT)
    A("s_waitcnt vmcnt(0)")
    for i in range(4): A("v_xor_b32 v%d, s%d, v%d", 16 + i, sTAG, 16 + i)
    A("v_or3_b32 v16, v16, v17, v18")
    A("v_or_b32 v16, v16, v19")
    A("v_cmp_ne_u32 vcc, 0, v16")
    A("s_cbranch_vccz LA_kvok")
    A("s_cmp_lt_u32 s%d, %d", sCNT, POLL_LIMIT)
    A("s_cbranch_scc1 LA_kvw")
    A.label("LA_kvok")
    A.wait(lg=None)
    A("s_barrier")
    stamp(3)
    def kv_piece(i):
        A("s_lshl_b32 s%d, s%d, 10", sT3, sW)
        A("s_add_u32 m0, s%d, %d", sT3, 8192 * i)
        A("s_add_u32 s%d, s%d, 0x%x", sT, sT3, WS_KV + 8192 * i)
        A.vmem("buffer_load_dwordx4 v%d, %s, s%d offen sc1 lds" % (vL16, sr(sWS, 4), sT), "kv%d" % i)
    NP0 = 3
    for i in range(NP0): kv_piece(i)
    def mall_warm():
        A("s_lshl_b32 s%d, s%d, 11", sT2, sL)
        for i, sd in enumerate((sWO, sW1, sW2)):
            A("s_cmp_eq_u32 s%d, %d", sW, i)
            A("s_cselect_b64 exec, 0xffff, 0")
            A.vmem("buffer_load_dword v%d, v%d, %s, s%d offen" % (T0 + 3, vTCH, sr(sd, 4), sT2), "mw")
        A("s_mul_i32 s%d, s%d, 7168", sT2, sL)
        A("s_and_b32 s%d, s%d, 1", sT3, sW)
        A("s_mul_i32 s%d, s%d, 3584", sT3, sT3)
        A("s_add_u32 s%d, s%d, s%d", sT2, sT2, sT3)
        A("s_lshr_b32 s%d, s%d, 1", sT3, sW)
        for i, sd in enumerate((sW3, sW4)):
            A("s_cmp_eq_u32 s%d, %d", sT3, 2 + i)
            A("s_cselect_b64 exec, 0xfffffff, 0")
            A.vmem("buffer_load_dword v%d, v%d, %s, s%d offen" % (T0 + 3, vTCH, sr(sd, 4), sT2), "mw")
        A("s_mov_b64 exec, -1")
    if OPT.get("mall", 2) == 1: mall_warm()
    A.lds("ds_read_b128 %s, v13" % vr(8, 4))
    A.lds("ds_read_b128 %s, v13 offset:1024" % vr(12 + 4, 4))
    A("s_mov_b32 s%d, %s", sT2, f32(QSCALE))
    A.wait(lg=None)
    for i in range(4): A("v_add_f32 v%d, v%d, v%d", QACC + i, QACC + i, 8 + i)
    for i in range(4): A("v_add_f32 v%d, v%d, v%d", QACC + 4 + i, QACC + 4 + i, 16 + i)
    for i in range(8): A("v_mul_f32 v%d, s%d, v%d", QACC + i, sT2, QACC + i)
    for i in range(4): A("v_cvt_pk_bf16_f32 v%d, v%d, v%d", Q + i, QACC + 2 * i, QACC + 2 * i + 1)
    if OPT["dbgq"]:
        A.vmem("buffer_store_dwordx4 %s, v%d, %s, s%d offen" % (vr(Q, 4), vL16, sr(sWS, 4), sOWN))
    for i in range(4): A("v_mov_b32 v%d, -1", SENT + i)
    A("v_and_b32 v8, 27, v0")
    A("v_cmp_eq_u32 vcc, 0, v8")
    A("v_mov_b32 v8, 0x%x", ONES)
    A("s_nop 0")
    A("v_cndmask_b32 v8, 0, v8, vcc")
    for p in range(2):
        for i in range(8): A("v_mov_b32 v%d, v8", VF[p] + i)

    NT = 64; TB = 4 * NP0 - 2; TF = OPT.get("tf", 36)
    def kvaddr(T): return (vL16, T * 2048) if T < 32 else (vHI, (T - 32) * 2048)
    def rdK(T, dst):
        b, o = kvaddr(T); A.lds("ds_read_b128 %s, v%d offset:%d" % (vr(dst, 4), b, o), "K%d" % T)
    def rdV(T, dst):
        b, o = kvaddr(T)
        A("s_mov_b64 exec, %s", sr(sVM, 2))
        A.lds("ds_read_b128 %s, v%d offset:%d" % (vr(dst, 4), b, o + 1024), "V%d" % T)
        A.lds("ds_read_b128 %s, v%d offset:%d" % (vr(dst + 4, 4), b, o + 768), "V%d" % T)
        A("s_mov_b64 exec, -1")
    def rowmajor_off(dst, tmp, frag_sreg, shift):
        A("v_and_b32 v%d, 31, v0", dst)
        A("v_lshlrev_b32 v%d, 10, v%d", dst, dst)
        A("v_lshrrev_b32 v%d, 5, v0", tmp)
        A("v_lshl_add_u32 v%d, v%d, 4, v%d", dst, tmp, dst)
        A("s_lshl_b32 s%d, s%d, 15", sT2, sg)
        A("s_lshl_b32 s%d, s%d, 8", sT3, sj)
        A("s_add_u32 s%d, s%d, s%d", sT2, sT2, sT3)
        A("s_lshl_b32 s%d, s%d, %d", sT3, frag_sreg, shift)
        A("s_add_u32 s%d, s%d, s%d", sT2, sT2, sT3)
    jobs = {}
    def job(t, f): jobs.setdefault(t, []).append(f)
    def fill(soff_reg, const):
        A("s_add_u32 s%d, s%d, 0x%x", sT, soff_reg, const)
        A.vmem("buffer_store_dwordx4 %s, v%d, %s, s%d offen sc1" % (vr(SENT, 4), vL16, sr(sWS, 4), sT), "fill")
    def touch(sd, per_cu, per_wave, extra):
        A("s_mul_i32 s%d, s%d, %d", sT, sIDX, per_cu)
        A("s_mul_i32 s%d, s%d, %d", sT2, sW, per_wave)
        A("s_add_u32 s%d, s%d, s%d", sT, sT, sT2)
        A.vmem("buffer_load_dword v%d, v%d, %s, s%d offen offset:%d" % (T0 + 3, vTCH, sr(sd, 4), sT, extra), "touch")
    for i in range(NP0, 10): job((i - NP0) // 2, lambda i=i: kv_piece(i))
    if OPT.get("mall", 2) == 2: job(4, mall_warm)
    if OPT.get("tsq", 0):
        for i, sd in enumerate((sWO, sW1, sW2)): job(i, lambda sd=sd: touch(sd, 16384, 2048, 0))
    def fill_stats():
        A("s_lshl_b32 s%d, s%d, 10", sSTP, sL)
        A("s_and_b32 s%d, s%d, 1", sT2, sW)
        A("s_lshl_b32 s%d, s%d, 18", sT2, sT2)
        A("s_add_u32 s%d, s%d, s%d", sT2, sT2, sSTP)
        fill(sT2, WS_SH)
    fl = [(sOFR, 0), (sOWN, WS_H), (sOWN, WS_HH), (sOWN, WS_X1), (sOWN, WS_PX)]
    def pretouch(soff_reg, const, mask):
        A("s_add_u32 s%d, s%d, 0x%x", sT, soff_reg, const)
        A("s_mov_b64 exec, 0x%x", mask)
        A.vmem("buffer_load_dword v%d, v%d, %s, s%d offen sc1" % (T0 + 3, vTCH, sr(sWS, 4), sT), "touch")
        A("s_mov_b64 exec, -1")
    def pretouch_misc():
        A("s_and_b32 s%d, s%d, 1", sT2, sW)
        A("s_lshl_b32 s%d, s%d, 18", sT2, sT2)
        A("s_add_u32 s%d, s%d, s%d", sT2, sT2, sSTP)
        pretouch(sT2, WS_SH, 0xff)
        A("s_lshl_b32 s%d, s%d, 8", sT2, sL)
        pretouch(sT2, WS_GF, 3)
    def pretouch_gx():
        A("s_mul_i32 s%d, s%d, %d", sT2, sL, 28 * KB)
        A("s_mul_i32 s%d, s%d, 3584", sT3, sW)
        A("s_add_u32 s%d, s%d, s%d", sT2, sT2, sT3)
        pretouch(sT2, WS_GX, 0xfffffff)
    if OPT.get("pretouch", 1) & 1:
        for i, a_ in enumerate(fl): job(TF + 4 + 5 * (i // 2) + (i % 2), lambda a_=a_: pretouch(a_[0], a_[1], 0xff))
        job(TF + 15, pretouch_misc)
    if OPT.get("pretouch", 1) & 2: job(OPT.get("tgx", 5), pretouch_gx)
    rounds = [(("sq", sWO, r), WO + 16 * r) for r in range(4)] + [(("sq", sW1, r), W1 + 16 * r) for r in range(4)] + \
             [(("sq", sW2, r), W2A + 16 * r) for r in range(2)] + [(("sq", sW2, 2), None)]
    t0 = OPT.get("t0", 9)
    tch = [(sW3, 0), (sW3, 3072), (sW4, 0), (sW4, 3072)]
    for i, (kind, dst) in enumerate(rounds):
        def d(kind=kind, i=i):
            A.wait(lg="rt%d" % (i - 1))
            round_dma(kind, SLOT_A, "rd%d" % i)
        job(t0 + 5 * i, d)
        if i < 3:
            job(t0 + 5 * i + 1, lambda i=i: kv_piece(10 + 2 * i)); job(t0 + 5 * i + 2, lambda i=i: kv_piece(11 + 2 * i))
        if i < 4: job(t0 + 5 * i + 3, lambda a=fl[i]: fill(*a))
        if i == 3: job(t0 + 5 * i + 2, lambda a=fl[4]: fill(*a))
        if i == 3: job(t0 + 5 * i + 1, fill_stats)
        tsel = {1: (3, 4, 6, 7), 2: (5, 7), 0: (), 3: (5, 7), 5: (-1, -2, 6, 8), 6: (-1, -2, 3, 5)}[OPT.get("touch", 0)]
        if i in tsel:
            sd, ex = tch[tsel.index(i)]
            job(t0 + 5 * i, lambda sd=sd, ex=ex: touch(sd, 57344, 7168, ex))
        if i == 2 and OPT.get("touch", 0) == 3:
            def t4():
                A("s_mul_i32 s%d, s%d, 7168", sT, sL)
                A("s_mul_i32 s%d, s%d, 3072", sT2, sW)
                A("s_add_u32 s%d, s%d, s%d", sT, sT, sT2)
                A("s_cmp_lt_u32 s%d, 2", sW)
                A("s_cselect_b64 exec, -1, 0")
                A.vmem("buffer_load_dword v%d, v%d, %s, s%d offen" % (T0 + 3, vTCH, sr(sW4, 4), sT), "touch")
                A("s_mov_b64 exec, -1")
            job(t0 + 5 * i, t4)
        if dst is not None:
            job(t0 + 5 * i + 4, lambda i=i, dst=dst: round_tr(SLOT_A, dst, "rd%d" % i, "rt%d" % i))
    job(TF + 3, lambda: round_dma(("sq", sW2, 3), SLOT_B, "w2r3"))
    job(TF + 13, lambda: round_dma(("w3", 0), SLOT_C, "w3r0"))
    def xres():
        rowmajor_off(T0, T0 + 1, st, 6)
        A.vmem("buffer_load_dwordx4 %s, v%d, %s, s%d offen" % (vr(XRES, 4), T0, sr(sX, 4), sT2), "xres")
        A.vmem("buffer_load_dwordx4 %s, v%d, %s, s%d offen offset:32" % (vr(XRES + 4, 4), T0, sr(sX, 4), sT2), "xres")
    job(TF + 8, xres)
    def stat_addr():
        A("s_and_b32 s%d, s%d, 1", sT, sg)
        A("s_lshl_b32 s%d, s%d, 1", sT, sT)
        A("s_add_u32 s%d, s%d, s%d", sT, sT, sG)
        A("s_sub_u32 s%d, s%d, 1", sT, sT)
        A("s_cmp_lt_u32 s%d, 32", sT)
        A("s_cselect_b32 s%d, s%d, s%d", sT, sT, sG)
        A("s_lshl_b32 s%d, s%d, 7", sT, sT)
        A("s_add_u32 s%d, s%d, 0x%x", sT, sT, WS_STAT)
        A("s_lshl_b32 s%d, s%d, 7", sT2, sG)
        A("s_add_u32 s%d, s%d, 0x%x", sT2, sT2, WS_STAT)
        A("v_and_b32 v%d, 7, v0", T0 + 1)
        A("v_lshlrev_b32 v%d, 2, v%d", T0 + 1, T0 + 1)
    def stat_load(track):
        f = A.vmem if track else A
        f("buffer_load_dword v%d, v%d, %s, s%d offen sc1" % (T0 + 2, T0 + 1, sr(sWS, 4), sT2))
        f("buffer_load_dword v%d, v%d, %s, s%d offen sc1" % (T0 + 3, T0 + 1, sr(sWS, 4), sT))
    job(60, lambda: (stat_addr(), stat_load(True)))
    prio = {0: 3, TB - 4: 2, TB - 2: 1, TB - 1: 0, TB: 3, TF - 10: 2, TF - 4: 1, TF - 1: 0, TF: 3, 54: 2, 60: 1, 63: 0}
    A.wait(vm="kv%d" % (NP0 - 1))
    A("s_barrier")
    rdK(0, KF[0]); rdK(1, KF[1])
    A.wait(lg="K0")
    A.mfma(S[0], KF[0], Q)
    A("s_nop 11")
    stamp(); stamp(3)
    for t in range(NT):
        p = t & 1; q = 1 - p
        if t == TB:
            A.wait(vm="kv9")
            A("s_barrier")
        if t == TF:
            A.wait(vm=["fill", "kv15"])
            A("s_barrier")
            A("v_mov_b32 v%d, s%d", T0, sNIB)
            A("s_lshl_b32 s%d, s%d, 7", sT, sG)
            A("s_lshl_b32 s%d, s%d, 2", sT2, sJJ)
            A("s_add_u32 s%d, s%d, s%d", sT, sT, sT2)
            A("s_add_u32 s%d, s%d, 0x%x", sT, sT, WS_STAT)
            A("s_cmp_lg_u32 s%d, 0", sW)
            A("s_cselect_b64 exec, 0, 1")
            A.vmem("buffer_store_dword v%d, v%d, %s, s%d offen sc1" % (T0, vL16, sr(sWS, 4), sT), "sig")
            A("s_mov_b64 exec, -1")
        if t in prio: A("s_setprio %d", prio[t])
        if t in (0, 5, 10, 18, 24, 30, 36, 42, 48, 56): stamp(5)
        valu = []
        for k in range(8):
            valu.append("v_exp_f32 v%d, v%d" % (S[p] + 2 * k, S[p] + 2 * k))
            valu.append("v_exp_f32 v%d, v%d" % (S[p] + 2 * k + 1, S[p] + 2 * k + 1))
            if k >= 1: valu.append("v_cvt_pk_bf16_f32 v%d, v%d, v%d" % (S[p] + k - 1, S[p] + 2 * k - 2, S[p] + 2 * k - 1))
        valu.append("v_cvt_pk_bf16_f32 v%d, v%d, v%d" % (S[p] + 7, S[p] + 14, S[p] + 15))
        for i, x in enumerate(valu):
            if i == 2:
                A.wait(lg=["V%d" % (t - 1), "K%d" % (t + 1)])
                if t >= 1: A.mfma(ACC, VF[q], S[q], ACC if t > 1 else None)
            if i == 5 and t + 2 < NT: rdK(t + 2, KF[p])
            if i == 7 and t >= 1: A.mfma(ACC, VF[q] + 4, S[q] + 4, ACC)
            if i == 11 and t + 1 < NT: A.mfma(S[q], KF[q], Q)
            if i == 15: rdV(t, VF[p])
            if i == 18:
                for jb in jobs.get(t, []): jb()
            A(x)
    A.wait(lg="V63")
    A("s_nop 0")
    A.mfma(ACC, VF[1], S[1], ACC)
    A.mfma(ACC, VF[1] + 4, S[1] + 4, ACC)
    A("s_mov_b32 s%d, 0", sCNT)
    A("s_branch L_stat2")
    A.label("L_stat")
    stat_addr(); stat_load(False)
    A.label("L_stat2")
    A("s_add_u32 s%d, s%d, 1", sCNT, sCNT)
    A("s_waitcnt vmcnt(0)"); A.vm = []
    A("v_xor_b32 v%d, s%d, v%d", T0 + 2, sNIB, T0 + 2)
    A("v_xor_b32 v%d, s%d, v%d", T0 + 3, sNIB, T0 + 3)
    A("v_or_b32 v%d, v%d, v%d", T0 + 3, T0 + 2, T0 + 3)
    A("v_cmp_lt_u32 vcc, 7, v%d", T0 + 3)
    A("s_cbranch_vccz L_stat_ok")
    A("s_cmp_lt_u32 s%d, %d", sCNT, POLL_LIMIT)
    A("s_cbranch_scc1 L_stat")
    A.label("L_stat_ok")
    A("v_cmp_ne_u32 vcc, 0, v%d", T0 + 2)
    A("s_cmp_eq_u64 vcc, 0")
    A("s_cselect_b32 s%d, 1, 0", sLOCS)
    A("v_cmp_ne_u32 vcc, 0, v%d", T0 + 3)
    A("s_cmp_eq_u64 vcc, 0")
    A("s_cselect_b32 s%d, 1, 0", sLOCN)
    A("s_mov_b32 s%d, 0x%08x", sT, (127 - 64) << 23)
    A("s_mov_b32 s%d, 0x%08x", sT2, (127 + 64) << 23)
    A("v_cmp_nge_f32 vcc, v%d, s%d", ACC, sT)
    A("s_cbranch_vccnz L_slow")
    A("v_cmp_nle_f32 vcc, v%d, s%d", ACC, sT2)
    A("s_cbranch_vccnz L_slow")
    A.label("L_attn_done")
    A("v_rcp_f32 v%d, v%d", T0, ACC)
    A("s_nop 0")
    for i in range(8): A("v_mul_f32 v%d, v%d, v%d", ACC + 8 + i, ACC + 8 + i, T0)
    for i in range(4): A("v_cvt_pk_bf16_f32 v%d, v%d, v%d", Q + i, ACC + 8 + 2 * i, ACC + 9 + 2 * i)
    A("v_min_u32 v%d, -2, v%d", Q, Q)
    publish([(Q, sWS, sOFR, 0)], sLOCS)
    stamp(); stamp(5)
    A("s_barrier")

    ACC0, POLL, BF, HP = 8, 24, 56, 72
    MU, R1, CSA = 80, 81, 83
    KA = 244
    vONE = 7
    A("v_mov_b32 v%d, 0x%x", vONE, ONES)
    def colsum(wregs, first):
        n = 0
        for w in wregs:
            for i in range(4):
                A("v_dot2_f32_bf16 v%d, v%d, v%d, %s", CSA, w + i, vONE, "0" if (first and n == 0) else "v%d" % CSA)
                n += 1
    def stats_out(x, const):
        s1, s2 = T0 + 2, T0 + 3
        A("v_mul_f32 v%d, v%d, v%d", s2, x, x)
        A("v_add_f32 v%d, v%d, v%d", s1, x, x + 1)
        for i in range(1, 16):
            A("v_fmac_f32 v%d, v%d, v%d", s2, x + i, x + i)
            if i >= 2: A("v_add_f32 v%d, v%d, v%d", s1, s1, x + i)
        A("s_lshl_b32 s%d, s%d, 2", sT, st)
        A("s_add_u32 s%d, s%d, s%d", sT, sT, sSTP)
        A("v_permlane32_swap_b32 v%d, v%d", s1, s2)
        A("s_add_u32 s%d, s%d, 0x%x", sT, sT, const)
        A("v_add_f32 v%d, v%d, v%d", s1, s1, s2)
        A("v_min_u32 v%d, -2, v%d", s1, s1)
        base = "buffer_store_dword v%d, v%d, %s, s%d offen" % (s1, vL16, sr(sWS, 4), sT)
        if OPT["local"]:
            l1, l2 = A.newlabel("Lp"), A.newlabel("Lq")
            A("s_cmp_eq_u32 s%d, 1", sLOCS)
            A("s_cbranch_scc1 %s", l1)
            A(base + " sc1")
            A("s_branch %s", l2)
            A.label(l1)
            A.vmem(base, "pub")
            A.label(l2)
        else: A.vmem(base + " sc1", "pub")
    def stats_share(tmp, ld, tag, tile_sreg):
        poll(ld, tag, True)
        A("v_add_f32 v%d, v%d, v%d", tmp, tmp, tmp + 1)
        A("v_add_f32 v%d, v%d, v%d", tmp + 2, tmp + 2, tmp + 3)
        A("s_lshl_b32 s%d, s%d, 2", sT, st)
        A("v_add_f32 v%d, v%d, v%d", tmp, tmp, tmp + 2)
        A("v_add_u32 v%d, s%d, v%d", tmp + 1, sT, vHI)
        A.lds("ds_write_b32 v%d, v%d offset:%d" % (tmp + 1, tmp, STATS - 64 * KB + KB * tile_sreg), "st")
    def stats_fin(tmp, tile, ka, twice):
        if tile is not None:
            A.lds("ds_read_b128 %s, v%d offset:%d" % (vr(tmp, 4), vHI, STATS - 64 * KB + KB * tile), "sf")
            yield
            yield
            A.wait(lg="sf")
        A("v_add_f32 v%d, v%d, v%d", tmp, tmp, tmp + 1)
        A("v_add_f32 v%d, v%d, v%d", tmp + 2, tmp + 2, tmp + 3)
        A("v_add_f32 v%d, v%d, v%d", tmp, tmp, tmp + 2)
        A("v_mul_f32 v%d, %s, v%d", tmp, f32(1.0 / 512), tmp)
        A("v_mov_b32 v%d, v%d", tmp + 1, tmp)
        yield
        A("s_nop 1")
        A("v_permlane32_swap_b32 v%d, v%d", tmp, tmp + 1)
        A("v_mov_b32 v%d, v%d", ka + 3, tmp)
        A("v_fma_f32 v%d, -v%d, v%d, v%d", tmp + 1, tmp, tmp, tmp + 1)
        yield
        A("v_max_f32 v%d, 0, v%d", tmp + 1, tmp + 1)
        A("v_add_f32 v%d, %s, v%d", tmp + 2, f32(EPS), tmp + 1)
        A("v_rsq_f32 v%d, v%d", tmp + 2, tmp + 2)
        A("s_nop 0")
        if twice:
            A("v_mov_b32 v%d, v%d", MU, tmp)
            A("v_mov_b32 v%d, v%d", R1, tmp + 2)
            A("v_mul_f32 v%d, v%d, v%d", tmp + 1, tmp + 1, tmp + 2)
            A("v_mul_f32 v%d, v%d, v%d", tmp + 1, tmp + 1, tmp + 2)
            A("v_add_f32 v%d, %s, v%d", tmp + 1, f32(EPS), tmp + 1)
            A("v_rsq_f32 v%d, v%d", tmp + 1, tmp + 1)
            A("s_nop 0")
            A("v_mul_f32 v%d, v%d, v%d", tmp + 2, tmp + 2, tmp + 1)
        yield
        A("v_rcp_f32 v%d, v%d", ka + 2, tmp + 2)
        A("v_mul_f32 v%d, %s, v%d", ka, f32(GA), tmp + 2)
        A("v_mul_f32 v%d, v%d, v%d", tmp + 1, tmp + 2, tmp + 2)
        A("v_mul_f32 v%d, v%d, v%d", tmp + 1, tmp + 1, tmp + 2)
        A("v_mul_f32 v%d, %s, v%d", ka + 1, f32(GB), tmp + 1)
        yield
    def cs_table(dst, slot):
        A("v_mov_b32 v%d, v%d", T0 + 2, CSA)
        A("s_add_u32 s%d, s%d, %d", sT, sSTG, slot)
        A("s_nop 0")
        A("v_permlane32_swap_b32 v%d, v%d", CSA, T0 + 2)
        A("v_lshlrev_b32 v%d, 2, v0", T0 + 1)
        A("v_add_f32 v%d, v%d, v%d", CSA, CSA, T0 + 2)
        A("v_add_u32 v%d, s%d, v%d", T0 + 1, sT, T0 + 1)
        A.lds("ds_write_b32 v%d, v%d" % (T0 + 1, CSA), "cw")
        A("v_lshrrev_b32 v%d, 5, v0", T0 + 1)
        A("v_lshlrev_b32 v%d, 4, v%d", T0 + 1, T0 + 1)
        A("v_add_u32 v%d, s%d, v%d", T0 + 1, sT, T0 + 1)
        A.wait(lg="cw")
        for a in range(4): A.lds("ds_read_b128 %s, v%d offset:%d" % (vr(dst + 4 * a, 4), T0 + 1, 32 * a), "cs")
        A.wait(lg="cs")
    def gelu_u(u, n, tmp, ka, pk):
        if pk:
            for i in range(0, n, 2): A("v_pk_mul_f32 %s, %s, %s", vr(tmp + i, 2), vr(u + i, 2), vr(u + i, 2))
            for i in range(0, n, 2): A("v_pk_fma_f32 %s, %s, %s, %s op_sel:[0,1,0] op_sel_hi:[1,1,0]", vr(tmp + i, 2), vr(tmp + i, 2), vr(ka, 2), vr(ka, 2))
            for i in range(0, n, 2): A("v_pk_mul_f32 %s, %s, %s", vr(tmp + i, 2), vr(tmp + i, 2), vr(u + i, 2))
            for i in range(n): A("v_exp_f32 v%d, v%d", tmp + i, tmp + i)
            for i in range(0, n, 2): A("v_pk_fma_f32 %s, %s, %s, %s op_sel_hi:[1,0,0]", vr(tmp + i, 2), vr(tmp + i, 2), vr(ka + 2, 2), vr(ka + 2, 2))
            for i in range(n): A("v_rcp_f32 v%d, v%d", tmp + i, tmp + i)
            for i in range(0, n, 2): A("v_pk_mul_f32 %s, %s, %s", vr(u + i, 2), vr(u + i, 2), vr(tmp + i, 2))
            yield
            return
        seq = []
        for i in range(n): seq.append((4, "v_mul_f32 v%d, v%d, v%d" % (tmp + i, u + i, u + i)))
        for i in range(n): seq.append((4, "v_fma_f32 v%d, v%d, v%d, v%d" % (tmp + i, tmp + i, ka + 1, ka)))
        for i in range(n): seq.append((4, "v_mul_f32 v%d, v%d, v%d" % (tmp + i, tmp + i, u + i)))
        for i in range(n): seq.append((8, "v_exp_f32 v%d, v%d" % (tmp + i, tmp + i)))
        for i in range(n): seq.append((4, "v_fma_f32 v%d, v%d, v%d, v%d" % (tmp + i, tmp + i, ka + 2, ka + 2)))
        for i in range(n): seq.append((8, "v_rcp_f32 v%d, v%d" % (tmp + i, tmp + i)))
        for i in range(n): seq.append((4, "v_mul_f32 v%d, v%d, v%d" % (u + i, u + i, tmp + i)))
        c = 0
        for cost, ins in seq:
            A(ins); c += cost
            if c >= 24: c = 0; yield
        yield
    def pack8(dst, src, san=True):
        for i in range(4): A("v_cvt_pk_bf16_f32 v%d, v%d, v%d", dst + i, src + 2 * i, src + 2 * i + 1)
        if san: A("v_min_u32 v%d, -2, v%d", dst, dst)
    def unpack(dst, src, nd):
        for i in range(nd):
            A("v_lshlrev_b32 v%d, 16, v%d", dst + 2 * i, src + i)
            A("v_and_b32 v%d, 0xffff0000, v%d", dst + 2 * i + 1, src + i)
    wC = [WO + 4 * k for k in range(16)]
    wD = [W1 + 4 * k for k in range(16)]
    wE = [W2A + 4 * k for k in range(8)] + [W2B + 4 * k for k in range(8)]
    def blocks(rs): return [W3R[r] + 4 * k for r in rs for k in range(4)]
    def trs(dsts, tagvm):
        for slot, d in zip((SLOT_A, SLOT_B, SLOT_C), dsts): round_tr(slot, d, tagvm, "tr3")
    def dmas(kinds):
        for slot, kd_ in zip((SLOT_A, SLOT_B, SLOT_C), kinds): round_dma(kd_, slot, "w3n")
    def shifted_off(dst):
        A("s_lshr_b32 s%d, s%d, 1", sT, st)
        A("s_add_u32 s%d, s%d, 1", sT, sT)
        A("s_sub_u32 s%d, 0, s%d", sT2, sT)
        A("s_bitcmp1_b32 s%d, 0", st)
        A("s_cselect_b32 s%d, s%d, s%d", sT, sT, sT2)
        A("s_lshl_b32 s%d, s%d, 5", sT2, sg)
        A("s_add_u32 s%d, s%d, s%d", sT, sT, sT2)
        A("v_and_b32 v%d, 31, v0", dst)
        A("v_add_u32 v%d, s%d, v%d", dst, sT, dst)
        A("v_ashrrev_i32 v%d, 5, v%d", T0 + 2, dst)
        A("v_lshlrev_b32 v%d, 15, v%d", T0 + 2, T0 + 2)
        A("v_and_b32 v%d, 31, v%d", dst, dst)
        A("v_lshl_add_u32 v%d, v%d, 4, v%d", dst, dst, T0 + 2)
        A("v_and_b32 v%d, 32, v0", T0 + 2)
        A("v_lshl_add_u32 v%d, v%d, 4, v%d", dst, T0 + 2, dst)
        A("v_min_u32 v%d, 0x7fff0000, v%d", dst, dst)
    def late(gen, skip):
        for _ in range(skip): yield
        for _ in gen: yield
    def cs3_tile():
        A("s_mul_i32 s%d, s%d, 7", sT, sJJ)
        A("s_min_u32 s%d, s%d, 6", sT2, sW)
        A("s_add_u32 s%d, s%d, s%d", sT, sT, sT2)
        A("s_lshl_b32 s%d, s%d, 11", sT, sT)
        A("s_add_u32 s%d, s%d, 0x%x", sT, sT, WS_CS)
    def cs3_publish(sums=True):
        if sums: colsum(blocks([0]), True)
        cs3_tile()
        A("v_mov_b32 v%d, v%d", T0 + 2, CSA)
        A("s_lshl_b32 s%d, s%d, 8", sT2, sROT)
        A("s_add_u32 s%d, s%d, s%d", sT, sT, sT2)
        A("v_permlane32_swap_b32 v%d, v%d", CSA, T0 + 2)
        A("v_lshlrev_b32 v%d, 3, v0", T0 + 1)
        A("v_add_f32 v%d, v%d, v%d", T0 + 2, CSA, T0 + 2)
        A("v_mov_b32 v%d, s%d", T0 + 3, sTAG)
        A("s_mov_b32 exec_lo, s%d", sW3M)
        A("s_mov_b32 exec_hi, 0")
        A.vmem("buffer_store_dwordx2 %s, v%d, %s, s%d offen sc1" % (vr(T0 + 2, 2), T0 + 1, sr(sWS, 4), sT), "csp")
        A("s_mov_b64 exec, -1")
    def cs3_loads(tmp, tag):
        cs3_tile()
        poll_issue([(tmp, vL16, sWS, sT, 0), (tmp + 4, vL16, sWS, sT, KB)], tag)
    def cs3_gather(tmp, scratch):
        l1, l2, l3 = A.newlabel("Lw"), A.newlabel("Lg"), A.newlabel("Lf")
        A("s_mov_b32 s%d, 0", sCNT)
        A.wait(vm="c3")
        A("s_branch %s", l3)
        A.label(l1)
        cs3_loads(tmp, None)
        A("s_add_u32 s%d, s%d, 1", sCNT, sCNT)
        A("s_waitcnt vmcnt(0)")
        A.label(l3)
        for i in (1, 3, 5, 7): A("v_xor_b32 v%d, s%d, v%d", tmp + i, sTAG, tmp + i)
        A("v_or3_b32 v%d, v%d, v%d, v%d", tmp + 1, tmp + 1, tmp + 3, tmp + 5)
        A("v_or_b32 v%d, v%d, v%d", tmp + 1, tmp + 1, tmp + 7)
        A("v_cmp_ne_u32 vcc, 0, v%d", tmp + 1)
        A("s_cbranch_vccz %s", l2)
        A("s_cmp_lt_u32 s%d, %d", sCNT, POLL_LIMIT)
        A("s_cbranch_scc1 %s", l1)
        A.label(l2)
        A("v_add_f32 v%d, v%d, v%d", tmp, tmp, tmp + 4)
        A("v_add_f32 v%d, v%d, v%d", tmp + 1, tmp + 2, tmp + 6)
        for sw in ("v_permlane32_swap_b32", "v_permlane16_swap_b32"):
            A("v_mov_b32 v%d, v%d", tmp + 2, tmp)
            A("v_mov_b32 v%d, v%d", tmp + 3, tmp + 1)
            A("s_nop 1")
            A("%s v%d, v%d", sw, tmp, tmp + 2)
            A("%s v%d, v%d", sw, tmp + 1, tmp + 3)
            A("v_add_f32 v%d, v%d, v%d", tmp, tmp, tmp + 2)
            A("v_add_f32 v%d, v%d, v%d", tmp + 1, tmp + 1, tmp + 3)
        A("s_lshl_b32 s%d, s%d, 7", sT, sW)
        A("s_add_u32 s%d, s%d, %d", sT, sT, scratch)
        A("v_and_b32 v%d, 15, v0", tmp + 2)
        A("v_lshlrev_b32 v%d, 3, v%d", tmp + 2, tmp + 2)
        A("v_add_u32 v%d, s%d, v%d", tmp + 2, sT, tmp + 2)
        A.lds("ds_write_b64 v%d, %s" % (tmp + 2, vr(tmp, 2)), "cw")
        A("v_lshrrev_b32 v%d, 5, v0", tmp + 2)
        A("v_lshlrev_b32 v%d, 4, v%d", tmp + 2, tmp + 2)
        A("v_add_u32 v%d, s%d, v%d", tmp + 2, sT, tmp + 2)
        A.wait(lg="cw")
        for a in range(4): A.lds("ds_read_b128 %s, v%d offset:%d" % (vr(CS + 4 * a, 4), tmp + 2, 32 * a), "cs")
        A.wait(lg="cs")

    w3regs = blocks(range(8))
    ACC1 = 24; GT = HP
    W4R = [40, 100, W3R[0], W3R[1], W3R[2], W3R[3], W3R[4]]
    def w4reg(n): return W4R[n // 4] + 4 * (n % 4)
    GAREA = [[96 * KB, 64 * KB, 78 * KB, 32 * KB], [110 * KB, 96 * KB, 64 * KB, 0]]
    EXG = 46 * KB
    sF0, sF1, sF2, sF3 = sOFR, sOWN, sB512, sB3
    sGXW, sGFW = sSTP, sROT
    def lds_at(addr): return (vL16, addr) if addr < 64 * KB else (vHI, addr - 64 * KB)
    def one_store(base, tag):
        if OPT["local"]:
            l1_, l2_ = A.newlabel("Lp"), A.newlabel("Lq")
            A("s_cmp_eq_u32 s%d, 1", sLOCS)
            A("s_cbranch_scc1 %s", l1_)
            A(base + " sc1")
            A("s_branch %s", l2_)
            A.label(l1_)
            A.vmem(base, tag)
            A.label(l2_)
        else: A.vmem(base + " sc1", tag)
    def f_epi(acc, ka, p, extra=(), mid=None):
        extra = list(extra)
        for i in range(16): A("v_fma_f32 v%d, -v%d, v%d, v%d", acc + i, ka + 3, CS + i, acc + i)
        A.wait(lg=None)
        n = 0
        for hf in range(2):
            for _ in gelu_u(acc + 8 * hf, 8, GT, ka, False):
                n += 1
                if n % 3 == 1 and extra: extra.pop(0)()
            pack8(acc + 8 * hf, acc + 8 * hf, False)
            if hf == 0 and mid: mid()
        for f in extra: f()
        A("s_lshl_b32 s%d, s%d, 11", sT, sW)
        A("v_add_u32 v%d, s%d, v%d", T0, sT, vHI)
        A("s_add_u32 s%d, s%d, %d", sT2, sGXW, p * 14 * KB)
        A.lds("ds_write_b128 v%d, %s offset:%d" % (T0, vr(acc, 4), GAREA[p][0] - 64 * KB))
        A.lds("ds_write_b128 v%d, %s offset:%d" % (T0, vr(acc + 8, 4), GAREA[p][0] - 64 * KB + KB))
        if OPT.get("gxsc1", 0):
            for d_, o_ in ((acc, 0), (acc + 8, KB)):
                A.vmem("buffer_store_dwordx4 %s, v%d, %s, s%d offen offset:%d sc1" % (vr(d_, 4), vL16, sr(sWS, 4), sT2, o_), "pub")
        else: publish([(acc, sWS, sT2, 0), (acc + 8, sWS, sT2, KB)], sLOCS)
    def g_flag(p):
        A.wait(vm="pub")
        A("v_mov_b32 v%d, s%d", T0 + 1, sTAG)
        A("s_mov_b64 exec, 1")
        one_store("buffer_store_dword v%d, v%d, %s, s%d offen offset:%d" % (T0 + 1, vL16, sr(sWS, 4), sGFW, 128 * p), "flag")
        A("s_mov_b64 exec, -1")
    def mloop(acc, n, wreg, addr, hooks, first=True, ring=None):
        ring = ring or [BF + 4 * i for i in range(4)]
        R = len(ring); D = R - 1
        def rd(k):
            b_, o_ = lds_at(addr(k))
            A.lds("ds_read_b128 %s, v%d offset:%d" % (vr(ring[k % R], 4), b_, o_), "b%d" % k)
        for k in range(min(D, n)): rd(k)
        for k in range(n):
            if k + D < n: rd(k + D)
            A.wait(lg="b%d" % k)
            A.mfma(acc, wreg(k), ring[k % R], acc if (k or not first) else None)
            for f in hooks.get(k, []): f()
    def hook(hooks, k, f): hooks.setdefault(k, []).append(f)
    def w4_block(r, i, slot):
        n = 4 * r + i
        dma_block(sW4, vW, (sB4, sPRT)[n // 14], (n % 14) * 16384, slot + KB * i, "w4r%d" % r)
    def add_dma(hooks, k, r, slot, step=1):
        for i in range(4): hook(hooks, k + step * i, lambda i=i: w4_block(r, i, slot))
    def add_swap(hooks, k, slot, dst, have, nxt):
        hook(hooks, k, lambda: round_tr(slot, dst, have, "sw%d" % slot))
        if nxt is not None:
            hook(hooks, k + 3, lambda: A.wait(lg="sw%d" % slot))
            add_dma(hooks, k + 3, nxt, slot)
    def swap_now(slot, dst, have, nxt):
        round_tr(slot, dst, have, "sw%d" % slot)
        if nxt is not None:
            A.wait(lg="sw%d" % slot); round_dma(("w4", nxt), slot, "w4r%d" % nxt)
    def g_offsets():
        A("s_mul_i32 s%d, s%d, %d", sGXW, sL, 28 * KB)
        A("s_lshl_b32 s%d, s%d, 11", sT, sW)
        A("s_add_u32 s%d, s%d, s%d", sGXW, sGXW, sT)
        A("s_add_u32 s%d, s%d, 0x%x", sGXW, sGXW, WS_GX)
        A("s_lshl_b32 s%d, s%d, 8", sGFW, sL)
        A("s_lshl_b32 s%d, s%d, 2", sT, sW)
        A("s_add_u32 s%d, s%d, s%d", sGFW, sGFW, sT)
        A("s_add_u32 s%d, s%d, 0x%x", sGFW, sGFW, WS_GF)
    def member(dst, sig):
        A("s_add_u32 s%d, s%d, %d", dst, sj, sig)
        A("s_and_b32 s%d, s%d, 3", dst, dst)
        A("s_and_b32 s%d, s%d, -4", sT, sL)
        A("s_add_u32 s%d, s%d, s%d", dst, dst, sT)
    def wait_gflags(p):
        lw, lg_ = A.newlabel("Lw"), A.newlabel("Lg")
        A("v_bfe_u32 v%d, v0, 3, 2", T0 + 2)
        A("v_lshlrev_b32 v%d, 8, v%d", T0 + 2, T0 + 2)
        A("v_and_b32 v%d, 7, v0", T0 + 3)
        A("v_min_u32 v%d, 6, v%d", T0 + 3, T0 + 3)
        A("v_lshl_add_u32 v%d, v%d, 2, v%d", T0 + 2, T0 + 3, T0 + 2)
        A("s_lshl_b32 s%d, s%d, 10", sT2, sg)
        A("s_add_u32 s%d, s%d, 0x%x", sT2, sT2, WS_GF + 128 * p)
        A("s_mov_b32 s%d, 0", sCNT)
        A.label(lw)
        A("buffer_load_dword v%d, v%d, %s, s%d offen sc1" % (T0 + 3, T0 + 2, sr(sWS, 4), sT2))
        A("s_add_u32 s%d, s%d, 1", sCNT, sCNT)
        A("s_waitcnt vmcnt(0)"); A.vm = []
        A("v_cmp_ne_u32 vcc, s%d, v%d", sTAG, T0 + 3)
        A("s_cbranch_vccz %s", lg_)
        A("s_cmp_lt_u32 s%d, %d", sCNT, POLL_LIMIT)
        A("s_cbranch_scc1 %s", lw)
        A.label(lg_)
    def g_fetch(p, sig, per_wave=False):
        member(sT3, sig)
        A("s_mul_i32 s%d, s%d, %d", sT3, sT3, 28 * KB)
        if per_wave:
            A("s_add_u32 s%d, s%d, s%d", sT3, sT3, sSTG)
            A("s_add_u32 m0, s%d, %d", sSTG, GAREA[p][sig])
            A("s_add_u32 s%d, s%d, 0x%x", sT, sT3, WS_GX + p * 14 * KB)
            for i in range(4):
                if i == 2:
                    A("s_cmp_lt_u32 s%d, 3", st)
                    A("s_cselect_b64 exec, -1, 0")
                A.vmem("buffer_load_dwordx4 v%d, %s, s%d offen offset:%d sc1 lds" % (vL16, sr(sWS, 4), sT, KB * i), "gf")
            A("s_mov_b64 exec, -1")
            return
        for b_ in range(14):
            if b_ % 4 == 0:
                A("s_mov_b32 m0, %d", GAREA[p][sig] + KB * b_)
                A("s_add_u32 s%d, s%d, 0x%x", sT, sT3, WS_GX + (p * 14 + b_) * KB)
            A.vmem("buffer_load_dwordx4 v%d, %s, s%d offen offset:%d sc1 lds" % (vL16, sr(sWS, 4), sT, KB * (b_ % 4)), "gf")
    a_first = lambda k: ACT0 + KB * k
    a_second = lambda k: SLOT_C + KB * k

    CS3S = STATS + 2 * KB
    def read_ka():
        for i in range(2): A.lds("ds_read_b128 %s, v%d offset:%d" % (vr(KA + 4 * i, 4), vHI, STATS - 64 * KB + KB * i), "ka")
    def f_body(lead):
        h0, h1 = {}, {}
        ring8 = [BF + 4 * i for i in range(4)] + [ACC1 + 4 * i for i in range(4)]
        add_dma(h0, 14, 0, SLOT_B, 2)
        add_swap(h0, 22, SLOT_A, W3R[7], "w3r7", 1)
        if not lead: hook(h0, 0, read_ka)
        mloop(ACC0, 32, lambda k: w3regs[k], a_first, h0, ring=ring8)
        stamp(4)
        A("s_setprio %d", 1 if lead else 0)
        if lead:
            A("s_barrier")
            read_ka()
            A("s_nop 6")
            A.wait(lg="ka")
        else: A("s_nop 10")
        def mid0():
            round_tr(SLOT_B, W4R[0], "w4r0", "swb")
        f_epi(ACC0, KA, 0, (), mid0)
        A.wait(lg="swb")
        round_dma(("w4", 2), SLOT_B, "w4r2")
        g_flag(0)
        if lead: stamp(4)
        add_swap(h1, 0, SLOT_A, W4R[1], "w4r1", 3)
        add_swap(h1, 16, SLOT_B, W4R[2], "w4r2", 4)
        add_swap(h1, 24, SLOT_A, W4R[3], "w4r3", 5)
        mloop(ACC1, 32, lambda k: w3regs[k], a_second, h1)
        stamp(4)
    def tail_lead():
        A("s_setprio 3")
        A("s_barrier")
        stamp(); stamp(4)
        round_dma(("w3", 7), SLOT_A, "w3r7")
        g_offsets()
        hg = {}
        f_body(True)
        A("s_nop 10")
        f_epi(ACC1, KA + 4, 1, (), lambda: round_tr(SLOT_B, W4R[4], "w4r4", "swb"))
        A.wait(lg="swb")
        round_dma(("w4", 6), SLOT_B, "w4r6")
        g_flag(1)
        A("s_lshl_b32 s%d, s%d, 12", sT, st)
        A("v_add_u32 v%d, s%d, v%d", HP, sT, vL16)
        A.wait(lg=None)
        stamp(4)
        A("s_barrier")
        stamp(); stamp(4)
        A("s_setprio 3")
        ringG = [BF + 4 * i for i in range(4)] + [W3R[5] + 4 * i for i in range(4)]
        hook(hg, 5, lambda: round_tr(SLOT_A, W4R[5], "w4r5", "swa"))
        hook(hg, 13, lambda: round_tr(SLOT_B, W4R[6], "w4r6", "swb"))
        mloop(ACC0, 14, w4reg, lambda k: GAREA[0][0] + KB * k, hg, ring=ringG)
        A("s_barrier")
        mloop(ACC0, 14, lambda k: w4reg(14 + k), lambda k: GAREA[0][1] + KB * k, {}, first=False, ring=ringG)
        A("s_nop 11")
        for i in range(4): A.lds("ds_write_b128 v%d, %s offset:%d" % (HP, vr(ACC0 + 4 * i, 4), EXG + KB * i))
        A.wait(lg=None)
        stamp(4)
        A("s_barrier")
        A("s_setprio 1")
        wait_gflags(1)
        for sig in (1, 2, 3): g_fetch(1, sig, True)
        stamp(4)
        mloop(ACC1, 14, w4reg, lambda k: GAREA[1][0] + KB * k, {}, ring=ringG)
        A.wait(vm=None)
        stamp(4)
        A("s_barrier")
        mloop(ACC1, 14, lambda k: w4reg(14 + k), lambda k: GAREA[1][1] + KB * k, {}, first=False, ring=ringG)
        A("s_nop 11")
        for i in range(4): A.lds("ds_write_b128 v%d, %s offset:%d" % (HP, vr(ACC1 + 4 * i, 4), EXG + KB * i))
        A.wait(lg=None)
        A("s_barrier")
        stamp(); stamp(4)

    def tail_fin():
        for i, d in enumerate((sF0, sF1)):
            A("s_lshl_b32 s%d, s%d, 1", sT, st)
            A("s_add_u32 s%d, s%d, s%d", sT, sT, sROT)
            if i: A("s_add_u32 s%d, s%d, 1", sT, sT)
            A("s_and_b32 s%d, s%d, 7", sT, sT)
            A("s_lshl_b32 s%d, s%d, 12", sT, sT)
            A("s_xor_b32 s%d, s%d, 1", sT2, sg)
            A("s_lshl_b32 s%d, s%d, 15", sT2, sT2)
            A("s_add_u32 s%d, s%d, s%d", d, sT, sT2)
            A("s_add_u32 s%d, s%d, 0x%x", d, d, WS_X1)
        fx = (vL16, sWS, sF0, sF1, ACT0)
        probe(fx, lambda: stats_out(ACC0, WS_SX))
        dfetch_issue(fx, "a")
        cs3_loads(PART + 8, "c3")
        trs(W3R[4:7], "none")
        A("s_xor_b32 s%d, s%d, 0x8000", sF2, sF0)
        A("s_xor_b32 s%d, s%d, 0x8000", sOWNR, sF1)
        fy = (vL16, sWS, sF2, sOWNR, SLOT_C)
        dfetch_check(fx, "a", BX)
        stamp(6)
        A("s_barrier")
        stamp(); stamp(4)
        A("s_cmp_eq_u32 s%d, 7", sW)
        A("s_cbranch_scc1 L_w7")
        sv = (list(A.vm), list(A.lg), nstamp[0])
        A("s_setprio 2")
        dfetch_issue(fy, "a2")
        cs3_gather(PART + 8, CS3S)
        dfetch_check(fy, "a2", 100)
        A("s_barrier")
        round_dma(("w3", 7), SLOT_A, "w3r7")
        g_offsets()
        stamp(4)
        f_body(False)
        A.wait(lg=None)
        stamp(4)
        A("s_barrier")
        stamp(); stamp(4)
        A("s_setprio 2")
        A("s_nop 8")
        f_epi(ACC1, KA + 4, 1, (), lambda: (A("s_barrier"), round_tr(SLOT_B, W4R[4], "w4r4", "swb")))
        A.wait(lg="swb")
        round_dma(("w4", 6), SLOT_B, "w4r6")
        A("s_branch L_w7j")
        svj = (list(A.vm), list(A.lg))
        A.label("L_w7")
        A.vm, A.lg, nstamp[0] = list(sv[0]), list(sv[1]), sv[2]
        A("s_setprio 3")
        A("s_xor_b32 s%d, s%d, 1", sT2, sg)
        A("s_lshl_b32 s%d, s%d, 12", sF0, sT2)
        A("s_add_u32 s%d, s%d, 0x%x", sF0, sF0, WS_SX)
        A("s_xor_b32 s%d, s%d, 0x1000", sF1, sF0)
        SB = W3R[0]
        lst = [(SB + 4 * i, vL16, sWS, sF0 if i < 4 else sF1, KB * (i % 4)) for i in range(8)]
        poll_issue(lst, "s0")
        dfetch_issue(fy, "a2")
        poll(lst, "s0", True)
        for tl in range(2):
            b0 = SB + 16 * tl
            for n in (8, 4):
                for i in range(n): A("v_add_f32 v%d, v%d, v%d", b0 + i, b0 + i, b0 + n + i)
            run(stats_fin(b0, None, KA + 4 * tl, False))
            A.lds("ds_write_b128 v%d, %s offset:%d" % (vHI, vr(KA + 4 * tl, 4), STATS - 64 * KB + KB * tl))
        dfetch_check(fy, "a2", 100)
        stamp(4)
        A("s_barrier")
        round_dma(("w4", 0), SLOT_B, "w4r0"); round_dma(("w4", 1), SLOT_A, "w4r1")
        for r in range(3): swap_now((SLOT_B, SLOT_A)[r % 2], W4R[r], "w4r%d" % r, r + 2)
        stamp(4)
        wait_gflags(0)
        stamp(4)
        g_fetch(0, 1); g_fetch(0, 2)
        stamp(4)
        A("s_barrier")
        stamp(); stamp(4)
        g_fetch(0, 3)
        round_tr(SLOT_A, W4R[3], "none", "swa"); round_tr(SLOT_B, W4R[4], "none", "swb")
        A.wait(lg=None)
        round_dma(("w4", 5), SLOT_A, "w4r5"); round_dma(("w4", 6), SLOT_B, "w4r6")
        A.wait(vm="gf")
        A("s_barrier")
        A("s_setprio 2")
        A.label("L_w7j")
        A.vm = ["pub"] + ["w4r6"] * 4; A.lg = ["x"]
        RES = W3R[5]
        EXR = W3R[7]
        A("s_lshl_b32 s%d, s%d, 12", sT, st)
        A("v_add_u32 v%d, s%d, v%d", HP, sT, vL16)
        ringG = [BF + 4 * i for i in range(4)] + [CS + 4 * i for i in range(4)]
        def rd_ex():
            for i in range(4): A.lds("ds_read_b128 %s, v%d offset:%d" % (vr(EXR + 4 * i, 4), HP, EXG + KB * i), "ex")
        def flag1():
            A.wait(vm="pub")
            A("v_mov_b32 v%d, s%d", T0 + 1, sTAG)
            A("s_and_b32 exec_lo, s%d, 1", sW3M)
            A("s_mov_b32 exec_hi, 0")
            one_store("buffer_store_dword v%d, v%d, %s, s%d offen offset:128" % (T0 + 1, vL16, sr(sWS, 4), sGFW), "flag")
            A("s_mov_b64 exec, -1")
        def res_load():
            A("s_add_u32 s%d, s%d, 0x%x", sT2, sOWN2, WS_H)
            A("s_add_u32 s%d, s%d, 0x%x", sT3, sOWN2, WS_X1)
            for i in range(4):
                A.vmem("buffer_load_dwordx4 %s, v%d, %s, s%d offen offset:%d sc1" % (vr(RES + 4 * i, 4), vL16, sr(sWS, 4), sT2 if i < 2 else sT3, KB * (i % 2)), "res")
        hp = {}
        flag1()
        hook(hp, 4, lambda: round_tr(SLOT_A, W4R[5], "none", "swa"))
        hook(hp, 14, lambda: round_tr(SLOT_B, W4R[6], "w4r6", "swb"))
        hook(hp, 22, lambda: A.wait(lg="swb"))
        hook(hp, 8, lambda: (stamp(4), A("s_barrier"), rd_ex()))
        hook(hp, 10, res_load)
        mloop(ACC0, 28, w4reg, lambda k: GAREA[0][2 + k // 14] + KB * (k % 14), hp, ring=ringG)
        A("s_xor_b32 s%d, s%d, 0x8000", sT2, sOWN2)
        A("s_add_u32 s%d, s%d, 0x%x", sT2, sT2, WS_PX)
        A("s_nop 9")
        for i in range(16): A("v_add_f32 v%d, v%d, v%d", ACC0 + i, ACC0 + i, EXR + i)
        pack8(ACC0, ACC0); pack8(ACC0 + 8, ACC0 + 8)
        publish([(ACC0, sWS, sT2, 0), (ACC0 + 8, sWS, sT2, KB)], sLOCS)
        stamp(4)
        A("s_setprio 0")
        A.wait(vm="res")
        unpack(ACC1, RES, 8); unpack(EXR, RES + 8, 8)
        for i in range(16): A("v_add_f32 v%d, v%d, v%d", ACC1 + i, ACC1 + i, EXR + i)
        A("s_add_u32 s%d, s%d, 0x%x", sF0, sOWN2, WS_PX)
        lp = [(RES + 4 * i, vL16, sWS, sF0, KB * i) for i in range(2)]
        stamp(4)
        A("s_barrier")
        hg = {}
        hook(hg, 12, lambda: poll_issue(lp, "px"))
        hook(hg, 8, lambda: (A("s_barrier"), rd_ex()))
        hook(hg, 22, lambda: (poll(lp, "px"), unpack(RES + 16, RES, 8)))
        hook(hg, 24, lambda: [A("v_add_f32 v%d, v%d, v%d", EXR + i, EXR + i, RES + 16 + i) for i in range(16)])
        hook(hg, 25, lambda: rowmajor_off(T0 + 1, T0 + 2, st, 6))
        mloop(ACC1, 28, w4reg, lambda k: GAREA[1][2 + k // 14] + KB * (k % 14), hg, first=False, ring=ringG)
        stamp(); stamp(4)
        A("s_nop 11")
        for i in range(0, 16, 2): A("v_pk_add_f32 %s, %s, %s", vr(ACC1 + i, 2), vr(ACC1 + i, 2), vr(EXR + i, 2))
        pack8(ACC1, ACC1, False); pack8(ACC1 + 8, ACC1 + 8, False)
        A("buffer_store_dwordx4 %s, v%d, %s, s%d offen" % (vr(ACC1, 4), T0 + 1, sr(sOUT, 4), sT2))
        A("buffer_store_dwordx4 %s, v%d, %s, s%d offen offset:32" % (vr(ACC1 + 8, 4), T0 + 1, sr(sOUT, 4), sT2))

    vEXW, vST8, vSH = 82, 82, 251
    sT8 = 75
    BX, PART = 24, 56
    def dfetch_issue(f, tag):
        voff, sd, so0, so1, lds = f
        for h_ in range(2):
            A("s_add_u32 m0, s%d, %d", sT8, lds + 4 * KB * h_)
            A("s_nop 0")
            for i in range(4):
                x = "buffer_load_dwordx4 v%d, %s, s%d offen offset:%d sc1 lds" % (voff, sr(sd, 4), (so0, so1)[h_], KB * i)
                if tag: A.vmem(x, tag)
                else: A(x)
    vPR, vPH = 249, 250
    def probe(f, shadow, halo=False):
        if OPT.get("probe", 2) == 0:
            if shadow: shadow()
            A.wait(vm="w3n")
            return
        if OPT.get("probe", 2) == 2:
            A.vm.append("pub0")
            if shadow: shadow()
            A.wait(vm="pub0")
            return
        voff, sd, so0, so1, lds = f
        def issue():
            if halo:
                A("buffer_load_dword v%d, v%d, %s, s%d offen sc1" % (BX, vPR, sr(sd, 4), sOWN))
                A("buffer_load_dword v%d, v%d, %s, s%d offen sc1" % (BX + 1, vPH, sr(sd, 4), so0))
            else:
                A("s_mov_b32 exec_hi, 0")
                A("buffer_load_dword v%d, v%d, %s, s%d offen sc1" % (BX, vPR, sr(sd, 4), so0))
                A("buffer_load_dword v%d, v%d, %s, s%d offen sc1" % (BX + 1, vPR, sr(sd, 4), so1))
                A("s_mov_b64 exec, -1")
        l1, l2, l3 = A.newlabel("Lw"), A.newlabel("Lg"), A.newlabel("Lf")
        A("v_mov_b32 v%d, 0", BX)
        A("v_mov_b32 v%d, 0", BX + 1)
        issue()
        if shadow: shadow()
        A("s_mov_b32 s%d, 0", sCNT)
        A("s_branch %s", l3)
        A.label(l1)
        issue()
        A("s_add_u32 s%d, s%d, 1", sCNT, sCNT)
        A.label(l3)
        A("s_waitcnt vmcnt(0)"); A.vm = []
        A("v_max_u32 v%d, v%d, v%d", T0, BX, BX + 1)
        A("v_cmp_eq_u32 vcc, -1, v%d", T0)
        A("s_cbranch_vccz %s", l2)
        A("s_cmp_lt_u32 s%d, %d", sCNT, POLL_LIMIT)
        A("s_cbranch_scc1 %s", l1)
        A.label(l2)
    def dfetch_check(f, tag, tmp):
        l1, l2, l3 = A.newlabel("Lw"), A.newlabel("Lg"), A.newlabel("Lf")
        A("s_mov_b32 s%d, 0", sCNT)
        A.wait(vm=tag, lg=None)
        A("s_branch %s", l3)
        A.label(l1)
        dfetch_issue(f, None)
        A("s_add_u32 s%d, s%d, 1", sCNT, sCNT)
        A("s_waitcnt vmcnt(0)")
        A.label(l3)
        for i in range(8): A("ds_read_b32 v%d, v%d offset:%d", tmp + i, vST8, f[4] - 32 * KB + KB * i)
        A("s_waitcnt lgkmcnt(0)")
        A("v_max_u32 v%d, v%d, v%d", T0, tmp, tmp + 1)
        for k in range(2, 8, 2): A("v_max3_u32 v%d, v%d, v%d, v%d", T0, T0, tmp + k, tmp + k + 1)
        A("v_cmp_eq_u32 vcc, -1, v%d", T0)
        A("s_cbranch_vccz %s", l2)
        A("s_cmp_lt_u32 s%d, %d", sCNT, POLL_LIMIT)
        A("s_cbranch_scc1 %s", l1)
        A.label(l2)
    A("s_cmp_lg_u32 s%d, 0", sKH)
    A("s_cbranch_scc1 L_fin")
    n_at_split = nstamp[0]
    A("v_add_u32 v%d, s%d, v%d", vEXW, sSTG, vHI)
    colsum(wD, True)
    def lead_phase(name, wregs, side, fix, rs, dsts, after):
        A("s_setprio 3")
        A("s_barrier")
        stamp(); stamp(6)
        def rd(k): A.lds("ds_read_b128 %s, v%d offset:%d" % (vr(POLL + 4 * (k % 8), 4), vHI, KB * k), "b%d" % k)
        for k in range(6): rd(k)
        for k in range(16):
            if k + 6 < 16: rd(k + 6)
            A.wait(lg="b%d" % k)
            A.mfma(ACC0, wregs[k], POLL + 4 * (k % 8), ACC0 if k else None)
            if side is not None and k >= 6: next(side, None)
        if side is not None: run(side)
        A("s_nop 11")
        stamp(6)
        if fix: fix()
        for i in range(4): A.lds("ds_write_b128 v%d, %s offset:%d" % (vEXW, vr(ACC0 + 4 * i, 4), 32 * KB + KB * i), "ex")
        A("s_setprio 0")
        if rs: round_dma(("w3", rs[0]), SLOT_A, "w3n")
        A.wait(lg="ex")
        A("s_barrier")
        stamp(); stamp(6); stamp(7)
        if rs:
            round_dma(("w3", rs[1]), SLOT_B, "w3n"); round_dma(("w3", rs[2]), SLOT_C, "w3n")
        stamp(7)
        trs(dsts, "w3n")
        A.wait(lg=None)
        after()
        stamp(6); stamp(6); stamp(6)
        for _ in range(5): stamp(7)
    lsh = [(BF, vL16, sWS, sB512, 0)]
    def after_c():
        A("s_lshl_b32 s%d, s%d, 8", sT, st)
        A("s_add_u32 s%d, s%d, %d", sT, sT, CSX)
        A("v_lshlrev_b32 v%d, 2, v0", T0 + 1)
        A("v_add_u32 v%d, s%d, v%d", T0 + 1, sT, T0 + 1)
        A.lds("ds_read_b32 v%d, v%d" % (T0 + 2, T0 + 1))
        A.wait(lg=None)
        A("v_add_f32 v%d, v%d, v%d", CSA, CSA, T0 + 2)
        cs_table(CS, SLOT_C)
        A("s_lshl_b32 s%d, s%d, 12", sB512, sg)
        A("s_lshl_b32 s%d, s%d, 10", sT, st)
        A("s_add_u32 s%d, s%d, s%d", sB512, sB512, sT)
        A("s_add_u32 s%d, s%d, 0x%x", sB512, sB512, WS_SH)
        colsum(blocks([0]), True)
        poll_issue(lsh, "sti")
        stats_share(BF, lsh, "sti", 0)
        cs3_publish(False)
        A.wait(lg=None)
    def fix_d():
        for i in range(16): A("v_fma_f32 v%d, -v%d, v%d, v%d", ACC0 + i, KA + 3, CS + i, ACC0 + i)
    lead_phase("C", wC, None, None, None, [W2B, W2B + 16, W3R[0]], after_c)
    lead_phase("D", wD, stats_fin(BF, 0, KA, False), fix_d, (1, 2, 3), W3R[1:4], lambda: (cs3_loads(BF, "c3"), cs3_gather(BF, CS3S)))
    lead_phase("E", wE, None, None, (4, 5, 6), W3R[4:7], lambda: None)
    stamp(6)
    tail_lead()
    A("s_branch L_join")

    A.label("L_fin")
    A.vm = []; A.lg = []
    nstamp[0] = n_at_split
    vEXR = T0 + 1
    A("s_lshl_b32 s%d, s%d, 13", sT8, st)
    A("s_add_u32 s%d, s%d, 0x8000", sT, sT8)
    A("v_add_u32 v%d, s%d, v%d", vST8, sT, vL16)
    A("s_lshl_b32 s%d, s%d, 15", sOWN, sg)
    A("s_add_u32 s%d, s%d, s%d", sOWN, sOWN, sT8)
    def fetch(name):
        if name == "E":
            A("s_add_u32 s%d, s%d, 4096", sOWNR, sT8)
            return (vSH, sHH, sT8, sOWNR, ACT0)
        A("s_add_u32 s%d, s%d, 0x%x", sOFR, sOWN, {"C": WS_O, "D": WS_H}[name])
        A("s_add_u32 s%d, s%d, 4096", sOWNR, sOFR)
        return (vL16, sWS, sOFR, sOWNR, ACT0)
    def fin_phase(name, wregs, rs, sh0, shadow, pre1, pre2, epi):
        ld = fetch(name)
        stamp(7)
        probe(ld, sh0, name == "E")
        stamp(7)
        dfetch_issue(ld, "a")
        stamp(7)
        if shadow: shadow()
        stamp(6); stamp(7)
        if OPT["stamps"] == 7:
            A.wait(vm="a"); stamp(7)
        dfetch_check(ld, "a", BX)
        stamp(7)
        if OPT["stamps"] == 6: A("s_mov_b32 s%d, s%d", sSTAMP + nstamp[0], sCNT); nstamp[0] += 1
        stamp(6)
        if pre1: pre1()
        A("s_setprio 2")
        A.wait(lg=None)
        A("s_barrier")
        stamp(); stamp(6); stamp(7)
        if rs: round_dma(("w3", rs[0]), SLOT_A, "w3n")
        def rd(k): A.lds("ds_read_b128 %s, v%d offset:%d" % (vr(BX + 4 * (k % 8), 4), vHI, KB * (16 + k)), "b%d" % k)
        for k in range(8): rd(k)
        if rs: round_dma(("w3", rs[1]), SLOT_B, "w3n")
        sd_ = pre2() if pre2 else None
        if rs: w3_base(rs[2])
        for k in range(16):
            A.wait(lg="b%d" % k)
            A.mfma(ACC0, wregs[k], BX + 4 * (k % 8), ACC0 if (k or name != "D") else None)
            if k + 8 < 16: rd(k + 8)
            if rs and k in (1, 3, 5, 7):
                A("s_mov_b64 exec, %s", sr(sW3M, 2))
                dma_block(sW3, vW3, sR3, (k // 2) * 16 * 3584, SLOT_C + KB * (k // 2), "w3n")
                A("s_mov_b64 exec, -1")
            if sd_ is not None and k >= 2: next(sd_, None)
            if k == OPT.get("kb2", 12):
                A("s_lshl_b32 s%d, s%d, 12", sT, st)
                A("v_add_u32 v%d, s%d, v%d", vEXR, sT, vHI)
                A.wait(lg=None)
                A("s_barrier")
                for i in range(4): A.lds("ds_read_b128 %s, v%d offset:%d" % (vr(PART + 4 * i, 4), vEXR, 32 * KB + KB * i), "part")
        A.wait(lg=None)
        A("s_nop 10")
        stamp(6)
        for i in range(0, 16, 2): A("v_pk_add_f32 %s, %s, %s", vr(ACC0 + i, 2), vr(ACC0 + i, 2), vr(PART + i, 2))
        epi()
        stamp(); stamp(6)
    def epi_c():
        pack8(HP, ACC0); pack8(HP + 4, ACC0 + 8)
        A("s_add_u32 s%d, s%d, 0x%x", sT2, sOWN2, WS_H)
        publish([(HP, sWS, sT2, 0), (HP + 4, sWS, sT2, KB)], sLOCS)
    unpack(ACC0, XRES, 8)
    A("v_lshlrev_b32 v%d, 7, v0", vPR)
    def c_shadow():
        shifted_off(vSH)
        A("s_bitcmp1_b32 s%d, 0", st)
        A("s_cselect_b32 s%d, 31, 0", sT)
        A("s_nop 3")
        A("v_readlane_b32 s%d, v%d, s%d", sT2, vSH, sT)
        A("v_and_b32 v%d, 60, v0", vPH)
        A("v_lshlrev_b32 v%d, 7, v%d", vPH, vPH)
        A("v_add_u32 v%d, s%d, v%d", vPH, sT2, vPH)
        A("s_lshl_b32 s%d, s%d, 8", sT, st)
        A("s_add_u32 s%d, s%d, %d", sT, sT, CSX)
        A("v_lshlrev_b32 v%d, 2, v0", T0 + 1)
        A("v_add_u32 v%d, s%d, v%d", T0 + 1, sT, T0 + 1)
        A.lds("ds_write_b32 v%d, v%d" % (T0 + 1, CSA))
    fin_phase("C", wC, None, None, lambda: (colsum(wD, True), c_shadow()), None, None, epi_c)
    def d_shadow():
        trs([W2B, W2B + 16, W3R[0]], "none")
    def d_pre2():
        return stats_fin(PART, 0, KA, True)
    def epi_d():
        run(gelu_u(ACC0, 16, PART, KA, True))
        pack8(PART, ACC0); pack8(PART + 4, ACC0 + 8)
        publish([(PART, sHH, sOWN2, 0), (PART + 4, sHH, sOWN2, KB)], sLOCN)
    def e_sh0():
        unpack(ACC0, HP, 8)
        for i in range(0, 16, 2): A("v_pk_add_f32 %s, %s, %s op_sel_hi:[1,0] neg_lo:[0,1] neg_hi:[0,1]", vr(ACC0 + i, 2), vr(ACC0 + i, 2), vr(MU, 2))
        for i in range(0, 16, 2): A("v_pk_mul_f32 %s, %s, %s op_sel:[0,1] op_sel_hi:[1,1]", vr(ACC0 + i, 2), vr(ACC0 + i, 2), vr(MU, 2))
    fin_phase("D", wD, (1, 2, 3), lambda: stats_out(ACC0, WS_SH), d_shadow, None, d_pre2, epi_d)
    def epi_e():
        pack8(PART, ACC0); pack8(PART + 4, ACC0 + 8)
        A("s_add_u32 s%d, s%d, 0x%x", sT2, sOWN2, WS_X1)
        publish([(PART, sWS, sT2, 0), (PART + 4, sWS, sT2, KB)], sLOCS)
    fin_phase("E", wE, (4, 5, 6), e_sh0, lambda: (trs(W3R[1:4], "none"), cs3_publish()), None, None, epi_e)
    tail_fin()
    A.label("L_join")
    A("s_or_b32 s%d, s%d, s%d", sT, sL, sW)
    A("s_cmp_lg_u32 s%d, 0", sT)
    A("s_cbranch_scc1 L_noep")
    A("v_lshrrev_b32 v8, 1, v0")
    A("v_lshlrev_b32 v8, 7, v8")
    A("v_and_b32 v9, 1, v0")
    A("v_lshl_add_u32 v8, v9, 4, v8")
    A("s_mov_b32 s%d, 0x%x", sT, WS_STAT)
    A("s_mov_b32 s%d, 0", sCNT)
    A.label("L_ep")
    A("buffer_load_dwordx4 v[12:15], v8, %s, s%d offen sc1" % (sr(sWS, 4), sT))
    A("s_add_u32 s%d, s%d, 1", sCNT, sCNT)
    A("s_waitcnt vmcnt(0)")
    for i in range(4): A("v_xor_b32 v%d, s%d, v%d", 12 + i, sTAG, 12 + i)
    A("v_or3_b32 v12, v12, v13, v14")
    A("v_or_b32 v12, v12, v15")
    A("v_cmp_lt_u32 vcc, 7, v12")
    A("s_cbranch_vccz L_ep2")
    A("s_cmp_lt_u32 s%d, %d", sCNT, POLL_LIMIT)
    A("s_cbranch_scc1 L_ep")
    A.label("L_ep2")
    A("v_mov_b32 v9, s%d", sTAG)
    A("s_mov_b32 s%d, 0x%x", sT, WS_EPOCH)
    A("s_mov_b64 exec, 1")
    A("buffer_store_dword v9, v%d, %s, s%d offen" % (vL16, sr(sWS, 4), sT))
    A("s_mov_b64 exec, -1")
    A.label("L_noep")
    if OPT["stamps"]:
        A("s_waitcnt vmcnt(0)")
        stamp(0)
        n = nstamp[0]
        print("stamps:", n)
        A("s_lshl_b32 s%d, s%d, 3", sT, sL)
        A("s_add_u32 s%d, s%d, s%d", sT, sT, sW)
        A("s_lshl_b32 s%d, s%d, 7", sT, sT)
        A("s_add_u32 s%d, s%d, 0x%x", sT, sT, WS_STAMP)
        A("v_mov_b32 v8, 0")
        for i in range(n):
            A("v_mov_b32 v9, s%d", sSTAMP + i)
            A("buffer_store_dword v9, v8, %s, s%d offen offset:%d" % (sr(sWS, 4), sT, 4 * i))
        A("s_memrealtime s[76:77]")
        A("s_waitcnt lgkmcnt(0)")
        A("v_mov_b32 v9, s3")
        A("buffer_store_dword v9, v8, %s, s%d offen offset:120" % (sr(sWS, 4), sT))
        A("v_mov_b32 v9, s76")
        A("buffer_store_dword v9, v8, %s, s%d offen offset:124" % (sr(sWS, 4), sT))
    A.label("K_end")
    A("s_endpgm")

    A.label("L_slow")
    MX = T0
    A("v_mov_b32 v%d, 0xff800000", MX)
    A("s_mov_b32 s%d, 0x%x", sCNT, WS_KV)
    A.label("L_slow1")
    A("buffer_load_dwordx4 %s, v%d, %s, s%d offen sc1" % (vr(KF[0], 4), vL16, sr(sWS, 4), sCNT))
    A("s_waitcnt vmcnt(0)")
    A.mfma(S[0], KF[0], Q)
    A("s_add_u32 s%d, s%d, 2048", sCNT, sCNT)
    A("s_nop 11")
    for i in range(0, 16, 2): A("v_max3_f32 v%d, v%d, v%d, v%d", MX, MX, S[0] + i, S[0] + i + 1)
    A("s_cmp_lt_u32 s%d, 0x%x", sCNT, WS_KV + 64 * 2048)
    A("s_cbranch_scc1 L_slow1")
    A("v_mov_b32 v%d, v%d", MX + 1, MX)
    A("s_nop 1")
    A("v_permlane32_swap_b32 v%d, v%d", MX, MX + 1)
    A("v_max_f32 v%d, v%d, v%d", MX, MX, MX + 1)
    for i in range(16): A("v_sub_f32 v%d, 0, v%d", S[1] + i, MX)
    for i in range(16): A("v_mov_b32 v%d, 0", ACC + i)
    A("s_mov_b32 s%d, 0x%x", sCNT, WS_KV)
    A.label("L_slow2")
    A("buffer_load_dwordx4 %s, v%d, %s, s%d offen sc1" % (vr(KF[0], 4), vL16, sr(sWS, 4), sCNT))
    A("s_mov_b64 exec, %s", sr(sVM, 2))
    A("buffer_load_dwordx4 %s, v%d, %s, s%d offen offset:1024 sc1" % (vr(VF[0], 4), vL16, sr(sWS, 4), sCNT))
    A("buffer_load_dwordx4 %s, v%d, %s, s%d offen offset:768 sc1" % (vr(VF[0] + 4, 4), vL16, sr(sWS, 4), sCNT))
    A("s_mov_b64 exec, -1")
    A("s_waitcnt vmcnt(0)")
    A.mfma(S[0], KF[0], Q, S[1])
    A("s_add_u32 s%d, s%d, 2048", sCNT, sCNT)
    A("s_nop 11")
    for i in range(16): A("v_exp_f32 v%d, v%d", S[0] + i, S[0] + i)
    for i in range(8): A("v_cvt_pk_bf16_f32 v%d, v%d, v%d", S[0] + i, S[0] + 2 * i, S[0] + 2 * i + 1)
    A("s_nop 1")
    A.mfma(ACC, VF[0], S[0], ACC)
    A.mfma(ACC, VF[0] + 4, S[0] + 4, ACC)
    A("s_nop 3")
    A("s_cmp_lt_u32 s%d, 0x%x", sCNT, WS_KV + 64 * 2048)
    A("s_cbranch_scc1 L_slow2")
    A("s_nop 11")
    A("s_branch L_attn_done")
    A.label("L_codeend")
    return A

def main():
    A = gen()
    out = OPT.get("out", "cdna_kernels/%s.s" % NAME)
    head = open("cdna_kernels/%s.s.ref" % NAME).read().split("\n")
    hdr = [l for l in head if l.startswith(";") and "@launch" not in l and "Override" not in l and "grid=ceil" not in l]
    body = [l.replace("CODE_SPAN", "0x7000") for l in A.L]
    tmp = '.amdgcn_target "amdgcn-amd-amdhsa--gfx950"\n.text\n' + "\n".join(body) + "\n"
    open("_k.s", "w").write(tmp)
    sz = [x[1] for x in inst_sizes("_k.s", "_k.o")]
    ni = sum(1 for l in body if is_inst(l))
    assert ni == len(sz), (ni, len(sz))
    span = (sum(sz) - 1024) & ~127
    body = [l.replace("CODE_SPAN", "0x%x" % span) for l in A.L]
    npad = 0
    if OPT["align"]: body, npad = align8(body, sz)
    print("%d instrs, %d bytes, %d pad nops" % (ni, sum(sz), npad))
    k = NAME + "_kernel"
    s = "\n".join(hdr) + "\n; @launch grid=(256,1,1) block=(512,1,1) lds=163840\n"
    s += '.amdgcn_target "amdgcn-amd-amdhsa--gfx950"\n.text\n.globl %s\n.p2align 8\n.type %s,@function\n%s:\n' % (k, k, k)
    s += "\n".join(body) + "\n"
    s += """.section .rodata,"a"
.p2align 6
.amdhsa_kernel %s
  .amdhsa_next_free_vgpr 256
  .amdhsa_next_free_sgpr 102
  .amdhsa_accum_offset 256
  .amdhsa_group_segment_fixed_size 0
  .amdhsa_kernarg_size 104
  .amdhsa_user_sgpr_count 2
  .amdhsa_user_sgpr_kernarg_segment_ptr 1
  .amdhsa_system_sgpr_workgroup_id_x 1
.end_amdhsa_kernel
""" % k
    open(out, "w").write(s)
    for p in hazard.check(s): print("HAZARD", p)
main()
```
